```python
import torch

def _softmax(x, axis=-1):
    return torch.softmax(x, dim=axis)
def _gelu(x):
    return torch.nn.functional.gelu(x, approximate="tanh")
def _silu(x):
    return torch.nn.functional.silu(x)
def _sigmoid(x):
    return torch.sigmoid(x)
def _layernorm(x, axis=-1, eps=1e-5):
    m = x.mean(dim=axis, keepdim=True)
    v = x.var(dim=axis, keepdim=True, unbiased=False)
    return (x - m) / torch.sqrt(v + eps)
def _scatter_add(tgt, idx, src, axis=0):
    return tgt.clone().index_add_(axis, idx, src)
def _segment_sum(src, seg, n):
    out = torch.zeros((n,) + src.shape[1:], dtype=src.dtype)
    return out.index_add_(0, seg, src)
def _pad(x, pw):
    flat = tuple(v for pair in reversed(pw) for v in pair)
    return torch.nn.functional.pad(x, flat)

kernel_name = 'sequential_preLN__sliding_block__glu_gated_bilinear__prompt'

def setup_inputs():

    _w = (lambda a: (lambda t: t.to(torch.bfloat16) if t.is_floating_point() else t)(torch.as_tensor(a)))
    def _A_setup():
        B, S, D = 1, 2048, 512
        return {
            "x": _w((lambda *s: torch.randn(*s, dtype=torch.bfloat16) * 0.05)(B, S, D)),
            "wqkv": _w((lambda *s: torch.randn(*s, dtype=torch.bfloat16) * 0.05)(D, 3 * D)),
            "wo": _w((lambda *s: torch.randn(*s, dtype=torch.bfloat16) * 0.05)(D, D)),
        }
    _A_in = _A_setup()

    def _B_setup():
        B, S, D, F = 1, 2048, 512, 1792
        return {
            "x": _w((lambda *s: torch.randn(*s, dtype=torch.bfloat16) * 0.05)(B, S, D)),
            "w_gate": _w((lambda *s: torch.randn(*s, dtype=torch.bfloat16) * 0.8)(D, F) * (D ** -0.5)),
            "w_up": _w((lambda *s: torch.randn(*s, dtype=torch.bfloat16) * 0.8)(D, F) * (D ** -0.5)),
            "w_down": _w((lambda *s: torch.randn(*s, dtype=torch.bfloat16) * 0.8)(F, D) * (F ** -0.5)),
        }
    _B_in = _B_setup()

    return {
        "A_x": _A_in["x"],
        "A_wqkv": _A_in["wqkv"],
        "A_wo": _A_in["wo"],
        "B_x": _B_in["x"],
        "B_w_gate": _B_in["w_gate"],
        "B_w_up": _B_in["w_up"],
        "B_w_down": _B_in["w_down"],
    }

def reference(A_x, A_wqkv, A_wo, B_x, B_w_gate, B_w_up, B_w_down):
    def _A_ref(x, wqkv, wo):
        B, S, D = x.shape
        H = 32; Dh = D // H; W = 256
        qkv = (lambda x, *d: x.permute(*d))((x @ wqkv).reshape(B, S, 3, H, Dh), 2, 0, 3, 1, 4)
        q, k, v = qkv[0], qkv[1], qkv[2]
        scores = torch.einsum("bhqd,bhkd->bhqk", q, k) * (Dh ** -0.5)
        idx = torch.arange(S)
        mask = (idx[:, None] - idx[None, :] >= 0) & (idx[:, None] - idx[None, :] < W)
        scores = torch.where(mask[None, None], scores, -1e9)
        p = _softmax(scores, axis=-1)
        o = torch.einsum("bhqk,bhkd->bhqd", p, v)
        return (lambda x, *d: x.permute(*d))(o, 0, 2, 1, 3).reshape(B, S, D) @ wo

    def _B_ref(x, w_gate, w_up, w_down):
        g = torch.einsum("bsd,df->bsf", x, w_gate)
        u = torch.einsum("bsd,df->bsf", x, w_up)
        h = g * u
        return torch.einsum("bsf,fd->bsd", h, w_down)

    x = A_x
    h = x + _A_ref(_layernorm(x, axis=-1), A_wqkv, A_wo)
    h2 = h + _B_ref(_layernorm(h, axis=-1), B_w_gate, B_w_up, B_w_down)
    return h2
```

```python
import re

TRANS = ("v_exp_f32", "v_log_f32", "v_rcp_f32", "v_rsq_f32", "v_sqrt_f32")
REG_RE = re.compile(r"^(-?)(?:abs\()?([vas])(?:(\d+)|\[(\d+):(\d+)\])\)?$")


def regs_of(op):
    op = op.strip()
    if op in ("vcc", "exec", "m0", "scc"):
        return {op}
    if op in ("vcc_lo", "vcc_hi"):
        return {"vcc"}
    if op in ("exec_lo", "exec_hi"):
        return {"exec"}
    m = REG_RE.match(op)
    if not m:
        return set()
    t = m.group(2)
    if m.group(3) is not None:
        return {(t, int(m.group(3)))}
    return {(t, i) for i in range(int(m.group(4)), int(m.group(5)) + 1)}


class Ins:
    __slots__ = ("text", "mn", "kind", "defs", "uses", "tok", "need", "srcc", "srcab", "passes", "stdata", "raw")

    def __init__(self, text, tok=None, need=(), raw=False):
        self.text = text.strip()
        self.tok = tok
        self.need = tuple(need) if not isinstance(need, str) else (need,)
        self.raw = raw
        self.defs, self.uses = set(), set()
        self.srcc, self.srcab, self.stdata = set(), set(), set()
        self.passes = 0
        t = self.text.split(";")[0].strip()
        if t.endswith(":") or t.startswith(".") or not t:
            self.mn, self.kind = t, "label"
            return
        parts = t.split(None, 1)
        mn = parts[0]
        self.mn = mn
        rest = parts[1] if len(parts) > 1 else ""
        ops = [o.strip() for o in rest.split(",")] if rest else []
        mods = []
        if ops:
            last = ops[-1].split()
            ops[-1] = last[0] if last else ""
            mods = last[1:]
        R = [regs_of(o) for o in ops]
        base = re.sub(r"_(e32|e64)$", "", mn)
        allr = set().union(*R) if R else set()
        rest_r = set().union(*R[1:]) if len(R) > 1 else set()
        if base.startswith("v_mfma"):
            self.kind = "mfma"
            self.passes = 8 if "32x32" in base else 4
            self.defs, self.srcab, self.srcc = R[0], R[1] | R[2], R[3]
            self.uses = self.srcab | self.srcc
        elif base.startswith("v_"):
            self.kind = "trans" if base in TRANS else ("dot" if base.startswith("v_dot") else "valu")
            self.uses = set(rest_r) | {"exec"}
            self.defs = set(R[0])
            if base.startswith("v_permlane"):
                self.defs = R[0] | R[1]
                self.uses = R[0] | R[1] | {"exec"}
            elif base.startswith(("v_fmac", "v_dot2c")):
                self.uses |= R[0]
            elif base.startswith(("v_add_co", "v_sub_co", "v_addc_co")):
                self.defs = R[0] | R[1]
                self.uses = set().union(*R[2:]) | {"exec"}
            elif base == "v_nop":
                pass
        elif base.startswith(("buffer_load", "global_load")):
            if "lds" in mods:
                self.kind = "dma"
                self.uses = allr | {"m0", "exec"}
            else:
                self.kind = "vld"
                self.defs, self.uses = R[0], rest_r | {"exec"}
        elif base.startswith(("buffer_store", "global_store")):
            self.kind = "vst"
            self.uses = allr | {"exec"}
            self.stdata = R[0] if base.startswith("buffer") else R[1]
            if not base.endswith(("x3", "x4")):
                self.stdata = set()
        elif base.startswith(("buffer_wbl2", "buffer_inv")):
            self.kind = "vst"
        elif base.startswith("ds_read"):
            self.kind = "dsr"
            self.defs, self.uses = R[0], rest_r | {"exec"}
        elif base.startswith("ds_"):
            self.kind = "dsw"
            self.uses = allr | {"exec"}
        elif base.startswith(("s_load", "s_memtime", "s_memrealtime")):
            self.kind = "smem"
            self.defs, self.uses = R[0], rest_r
        elif base == "s_waitcnt":
            self.kind = "wait"
        elif base == "s_nop":
            self.kind = "nop"
        elif base == "s_barrier":
            self.kind = "barrier"
        elif base.startswith(("s_cbranch", "s_branch", "s_endpgm", "s_setpc")):
            self.kind = "branch"
            if "vcc" in base:
                self.uses = {"vcc"}
            elif "scc" in base:
                self.uses = {"scc"}
        elif base.startswith("s_cmp") or base.startswith("s_bitcmp"):
            self.kind = "salu"
            self.defs, self.uses = {"scc"}, allr
        elif base.startswith("s_"):
            self.kind = "salu"
            if base in ("s_sleep", "s_setprio"):
                return
            self.defs, self.uses = set(R[0]), set(rest_r)
            if not base.startswith(("s_mov", "s_getreg", "s_getpc", "s_mul_i32", "s_cselect")):
                self.defs |= {"scc"}
            if base.startswith(("s_cselect", "s_addc", "s_subb")):
                self.uses |= {"scc"}
            if "saveexec" in base:
                self.defs |= {"exec"}
                self.uses |= {"exec"}
            if base.startswith(("s_addk", "s_mulk")):
                self.uses |= R[0]
        else:
            raise ValueError("unknown instruction: " + text)

    def states(self):
        if self.kind == "label":
            return 0
        if self.kind == "nop":
            return int(self.text.split()[1], 0) + 1
        return 1


def isv(r):
    return isinstance(r, tuple) and r[0] in "va"


def iss(r):
    return (isinstance(r, tuple) and r[0] == "s") or r == "vcc"


VALU_KINDS = ("valu", "trans", "dot")
VM_KINDS = ("vld", "vst", "dma")


def hazard_need(p, c):
    n = 0
    pv = {r for r in p.defs if isv(r)}
    if p.kind in VALU_KINDS:
        if c.kind == "mfma" and pv & c.uses:
            n = max(n, 3 if p.kind == "dot" else 2)
        if c.kind in VALU_KINDS:
            if c.mn.startswith("v_permlane") and pv & c.uses:
                n = max(n, 2)
            if c.mn.startswith(("v_readlane", "v_readfirstlane")) and pv & c.uses:
                n = max(n, 1)
            if p.kind == "trans" and c.kind != "trans" and pv & c.uses:
                n = max(n, 1)
            if "dpp" in c.text or "row_" in c.text:
                if pv & c.uses:
                    n = max(n, 2)
        if p.kind == "dot" and pv & (c.uses | c.defs) and not (c.mn == p.mn and not (pv & (c.uses - c.defs))):
            n = max(n, 3)
        ps = {r for r in p.defs if iss(r)}
        if ps & c.uses:
            if c.kind in VM_KINDS:
                n = max(n, 5)
            elif c.kind in VALU_KINDS:
                n = max(n, 4 if c.mn.startswith(("v_readlane", "v_writelane")) else 2)
            else:
                n = max(n, 1)
    if p.kind == "mfma":
        big = p.passes == 8
        if c.kind == "mfma":
            if p.defs & c.srcab:
                n = max(n, 12 if big else 8)
            if p.defs & c.srcc and not (p.defs == c.srcc and p.passes == c.passes):
                n = max(n, 10 if big else 6)
            if p.defs & c.defs and not (p.defs == c.defs and p.passes == c.passes):
                n = max(n, 10 if big else 6)
        elif p.defs & (c.uses | c.defs):
            n = max(n, 12 if big else 8)
        if c.kind in VALU_KINDS and (p.srcc & c.defs):
            n = max(n, 7 if big else 3)
    if p.kind == "salu" and "m0" in p.defs and c.kind == "dma":
        n = max(n, 1)
    if p.kind == "salu" and "exec" in p.defs and c.kind == "mfma":
        n = max(n, 1)
    if p.kind == "vst" and p.stdata & c.defs:
        n = max(n, 2)
    return n


class State:
    def __init__(self):
        self.vm = []
        self.lg = []
        self.hist = []
        self.done = set()

    def copy(self):
        s = State()
        s.vm, s.lg, s.hist, s.done = list(self.vm), list(self.lg), list(self.hist), set(self.done)
        return s


def finalize(instrs, st=None):
    st = st or State()
    out = []

    def push(i):
        out.append(i)
        if i.kind != "label":
            st.hist.append(i)
            if len(st.hist) > 24:
                st.hist.pop(0)

    def retire_vm(keep):
        while len(st.vm) > keep:
            st.done.add(st.vm.pop(0)[1])

    def retire_lg(keep):
        while len(st.lg) > keep:
            st.done.add(st.lg.pop(0)[1])

    for c in instrs:
        if c.kind == "label":
            push(c)
            continue
        if c.kind == "wait":
            m = re.search(r"vmcnt\((\d+)\)", c.text)
            if m:
                retire_vm(int(m.group(1)))
            m = re.search(r"lgkmcnt\((\d+)\)", c.text)
            if m:
                n = int(m.group(1))
                if n == 0 or not any(e[2] for e in st.lg):
                    retire_lg(n)
            push(c)
            continue
        touch = c.uses | c.defs
        for t in c.need:
            known = t in st.done or any(e[1] == t for e in st.vm) or any(e[1] == t for e in st.lg)
            assert known, f"token {t} never produced before: {c.text}"
        vi = -1
        for i, e in enumerate(st.vm):
            if e[0] & touch or (e[1] is not None and e[1] in c.need):
                vi = i
        li = -1
        for i, e in enumerate(st.lg):
            if e[0] & touch or (e[1] is not None and e[1] in c.need):
                if c.kind == "dsr" and not e[2] and not (e[0] & c.uses) and not (e[1] is not None and e[1] in c.need):
                    continue
                li = i
        w = []
        if vi >= 0:
            n = len(st.vm) - vi - 1
            n = min(n, 63)
            w.append(f"vmcnt({n})")
            retire_vm(n)
        if li >= 0:
            n = len(st.lg) - li - 1
            if any(e[2] for e in st.lg):
                n = 0
            n = min(n, 15)
            w.append(f"lgkmcnt({n})")
            retire_lg(n)
        if w:
            push(Ins("s_waitcnt " + " ".join(w)))
        need, dist = 0, 0
        for p in reversed(st.hist):
            need = max(need, hazard_need(p, c) - dist)
            dist += p.states()
            if dist >= 20:
                break
        while need > 0:
            k = min(need, 16)
            push(Ins(f"s_nop {k-1}"))
            need -= k
        push(c)
        if c.kind in VM_KINDS:
            st.vm.append((set(c.defs), c.tok))
            assert len(st.vm) <= 63, "too many outstanding vector memory ops: " + c.text
        elif c.kind in ("dsr", "dsw"):
            st.lg.append((set(c.defs), c.tok, False))
        elif c.kind == "smem":
            st.lg.append((set(c.defs), c.tok, True))
    return out, st


class Seq:
    def __init__(self):
        self.l = []

    def __call__(self, text, tok=None, need=()):
        for ln in text.strip().split("\n"):
            ln = ln.strip()
            if ln:
                self.l.append(Ins(ln, tok=tok, need=need))
        return self

    def ext(self, other):
        self.l.extend(other.l if isinstance(other, Seq) else other)
        return self

    def __len__(self):
        return len(self.l)


def weave(main, fillers, start=0, end=None):
    main = main.l if isinstance(main, Seq) else main
    pos = [i for i, x in enumerate(main) if x.kind == "mfma"]
    pos = pos[start:end]
    out = []
    n, m = len(fillers), len(pos)
    slots = {}
    for k, g in enumerate(fillers):
        p = pos[min(m - 1, (k * m) // n)] if m else len(main) - 1
        slots.setdefault(p, []).extend(g)
    for i, x in enumerate(main):
        out.append(x)
        out.extend(slots.get(i, []))
    s = Seq()
    s.l = out
    return s


def groups(seq, n=1):
    l = seq.l if isinstance(seq, Seq) else seq
    return [l[i:i + n] for i in range(0, len(l), n)]


def render(instrs):
    return "\n".join((i.text if i.kind == "label" else "    " + i.text) for i in instrs) + "\n"
```

```python
import sys
from asmlib import *

NAME = "sequential_preLN__sliding_block__glu_gated_bilinear__prompt"

DEFAULTS = dict(
    stamps=False,
    force_safe=False,
    force_slow=False,
    dist=3,
    x=12,
    kvfs=128,
    gu_early=2,
    st_local="",
    st_act="",
    st_out="",
)

KBUF, VBUF, OBUF, HBUF, ACT = 0x0, 0x200000, 0x400000, 0x600000, 0x800000
STATS = 0xF00000
KFL, VFL = 0xF10000, 0xF30000
OFL, HFL, AFL, SFL = 0xF50000, 0xF54000, 0xF58000, 0xF5C000
EPOCH = 0xF60000
STAMP = 0xF80000
WS_BYTES = 0x1000000
R3 = 0x20000
BIGOFF = 0x40000000

SX, SWQ, SWO, SWG, SWU, SWD, SOUT, SWS = ("s[8:11]", "s[12:15]", "s[16:19]", "s[20:23]", "s[24:27]",
                                          "s[28:31]", "s[32:35]", "s[36:39]")
sG, sB, sJ, sW, sBLK, sR = "s40", "s41", "s42", "s43", "s44", "s45"
sTAG, sTAGlo, sTAGhi = "s[46:47]", "s46", "s47"
sPTAGlo, sPTAGhi = "s48", "s49"
sXCC, sLOCAL, sBUD = "s50", "s51", "s52"
sM0W = "s53"
sT0, sT1, sT2, sT3, sT4, sT5 = "s54", "s55", "s56", "s57", "s58", "s59"
sKV = ["s60", "s61", "s62", "s63"]
sCW, sCX, sPAN = "s64", "s65", "s66"
sVMASK = "s[68:69]"
sST = "s70"
sFL = "s71"
sHA, sHB = "s72", "s73"
sGU, sWDN = "s74", "s75"
sAA, sAB = "s76", "s77"
sSTAMP = "s78"
sONE = ["s80", "s81", "s82", "s83"]
sM0D = "s84"
sEX = "s[86:87]"

vL16 = "v1"
vZ = "v2"
vXR = 24


def vr(a, n=1):
    return f"v{a}" if n == 1 else f"v[{a}:{a+n-1}]"


def ar(a, n=1):
    return f"a{a}" if n == 1 else f"a[{a}:{a+n-1}]"


def mf32(d, a, b, c=None):
    return f"v_mfma_f32_32x32x16_bf16 {vr(d,16)}, {a}, {b}, {vr(d,16) if c is None else c}"


def mf16(d, a, b, c=None):
    return f"v_mfma_f32_16x16x32_bf16 {vr(d,4)}, {a}, {b}, {vr(d,4) if c is None else c}"


class Gen:
    def __init__(self, **kw):
        self.p = dict(DEFAULTS)
        self.p.update(kw)
        self.tail = []
        self.nlab = 0
        self.stamp_names = []

    def lab(self, s):
        self.nlab += 1
        return f"L_{s}_{self.nlab}"

    def stamp(self, name):
        s = Seq()
        if not self.p["stamps"]:
            return s
        i = len(self.stamp_names)
        self.stamp_names.append(name)
        s(f"s_memtime s[94:95]")
        s("s_waitcnt lgkmcnt(0)")
        s(f"v_writelane_b32 v3, s94, {i}")
        return s

    def poll_issue(self, dst, voff, soff):
        s = Seq()
        s(f"buffer_load_dwordx2 {vr(dst,2)}, {voff}, {SWS}, {soff} offen sc1")
        return s

    def poll_check(self, dst, voff, soff, expect=None, inv=True):
        ok, spin = self.lab("ok"), self.lab("spin")

        def cmp(s):
            if expect is None:
                s(f"v_cmp_ne_u64 vcc, {sTAG}, {vr(dst,2)}")
            else:
                s(f"v_or_b32 {vr(dst+3)}, 15, {vr(dst+1)}")
                s(f"v_mov_b32 {vr(dst+2)}, {vr(dst)}")
                s(f"v_cmp_ne_u64 vcc, {vr(dst+2,2)}, {vr(expect,2)}")
        s = Seq()
        cmp(s)
        s(f"s_cbranch_vccnz {spin}")
        s(f"{ok}:")
        t = Seq()
        t(f"{spin}:")
        t(f"s_sub_u32 {sBUD}, {sBUD}, 1")
        t("s_cbranch_scc1 L_abort")
        t(f"buffer_load_dwordx2 {vr(dst,2)}, {voff}, {SWS}, {soff} offen sc1")
        t("s_waitcnt vmcnt(0)")
        cmp(t)
        t(f"s_cbranch_vccnz {spin}")
        t(f"s_branch {ok}")
        self.tail.append(t)
        if inv:
            acq, back = self.lab("acq"), self.lab("acqd")
            s(f"s_cmp_eq_u32 {sLOCAL}, 0")
            s(f"s_cbranch_scc1 {acq}")
            s(f"{back}:")
            t = Seq()
            t(f"{acq}:")
            t("buffer_inv sc1")
            t("s_waitcnt vmcnt(0)")
            t(f"s_branch {back}")
            self.tail.append(t)
        return s

    def publish(self, need, soff, tagv):
        slow, back = self.lab("rel"), self.lab("reld")
        s = Seq()
        s(f"s_cmp_eq_u32 {sLOCAL}, 0", need=need)
        s(f"s_cbranch_scc1 {slow}")
        s(f"buffer_store_dwordx2 {vr(tagv,2)}, {vZ}, {SWS}, {soff} offen")
        s(f"{back}:")
        t = Seq()
        t(f"{slow}:")
        t("s_waitcnt vmcnt(0)")
        t("buffer_wbl2 sc1")
        t("s_waitcnt vmcnt(0)")
        t(f"buffer_store_dwordx2 {vr(tagv,2)}, {vZ}, {SWS}, {soff} offen sc1")
        t(f"s_branch {back}")
        self.tail.append(t)
        return s

    def dma_voff(self, dst, n, stride, tmp, xmode=False):
        s = Seq()
        a, b, c = vr(tmp), vr(tmp + 1), vr(tmp + 2)
        s(f"v_lshrrev_b32 {a}, 3, v0")
        s(f"v_mul_u32_u24 {a}, {stride}, {a}")
        s(f"v_and_b32 {b}, 7, v0")
        if xmode:
            s(f"v_lshrrev_b32 {c}, 4, v0")
        else:
            s(f"v_bfe_u32 {c}, v0, 4, 1")
            s(f"v_lshlrev_b32 {c}, 2, {c}")
        s(f"v_xor_b32 {b}, {b}, {c}")
        for i in range(n):
            flip = ((i & 1) << 2) if xmode else ((i & 1) << 1)
            s(f"v_xor_b32 {c}, {flip}, {b}")
            s(f"v_lshl_add_u32 {c}, {c}, 4, {a}")
            s(f"v_add_u32 {vr(dst+i)}, {i*(8*stride-1024)}, {c}")
        return s

    def tr32_addr(self, dst, tmp):
        s = Seq()
        a, b, c = vr(tmp), vr(tmp + 1), vr(tmp + 2)
        d = vr(dst)
        s(f"v_bfe_u32 {a}, v0, 2, 2")
        s(f"v_lshrrev_b32 {b}, 5, v0")
        s(f"v_lshl_add_u32 {d}, {b}, 3, {a}")
        s(f"v_lshlrev_b32 {d}, 7, {d}")
        s(f"v_lshrrev_b32 {a}, 1, {a}")
        s(f"v_lshl_add_u32 {a}, {a}, 1, {b}")
        s(f"v_bfe_u32 {b}, v0, 4, 1")
        s(f"v_xor_b32 {a}, {a}, {b}")
        s(f"v_lshl_add_u32 {d}, {a}, 5, {d}")
        s(f"v_and_b32 {a}, 1, v0")
        s(f"v_bfe_u32 {b}, v0, 1, 1")
        s(f"v_lshl_add_u32 {a}, {a}, 1, {b}")
        s(f"v_lshl_add_u32 {d}, {a}, 3, {d}")
        return s

    def split_first(self, src, d, tmp):
        s = Seq()
        s(f"v_cvt_pk_bf16_f32 {vr(d+1)}, {src}, 0")
        s(f"v_lshlrev_b32 {vr(tmp)}, 16, {vr(d+1)}")
        s(f"v_sub_f32 {vr(tmp)}, {src}, {vr(tmp)}")
        s(f"v_cvt_pk_bf16_f32 {vr(d)}, {src}, {vr(tmp)}")
        return s

    def split_second(self, src, d, tmp):
        s = Seq()
        s(f"v_cvt_pk_bf16_f32 {vr(d)}, {src}, {src}")
        s(f"v_and_b32 {vr(tmp)}, 0xffff0000, {vr(d)}")
        s(f"v_sub_f32 {vr(tmp)}, {src}, {vr(tmp)}")
        s(f"v_cvt_pk_bf16_f32 {vr(d+1)}, {vr(tmp)}, 0")
        return s

    def selector(self, d):
        s = Seq()
        s(f"v_bfe_u32 {vr(d)}, v0, 2, 1")
        s(f"v_bfe_u32 {vr(d+1)}, v0, 4, 1")
        s(f"v_cmp_eq_u32 vcc, {vr(d)}, {vr(d+1)}")
        s(f"v_mov_b32 {vr(d+1)}, 0x3f803f80")
        s(f"v_cndmask_b32 {vr(d)}, 0, {vr(d+1)}, vcc")
        for i in (1, 2, 3):
            s(f"v_mov_b32 {vr(d+i)}, {vr(d)}")
        return s

    def prologue(self):
        p = self.p
        s = Seq()
        s("s_cmp_ge_u32 s2, 256")
        s("s_cbranch_scc1 L_end")
        s("s_load_dwordx16 s[80:95], s[0:1], 0")
        s("s_load_dwordx2 s[36:37], s[0:1], 72")
        s("s_getpc_b64 s[96:97]")
        s(f"s_getreg_b32 {sXCC}, hwreg(HW_REG_XCC_ID)")
        s("v_lshrrev_b32 v4, 6, v0")
        s("v_and_b32 v0, 63, v0")
        s(f"v_readfirstlane_b32 {sW}, v4")
        s(f"s_and_b32 {sXCC}, {sXCC}, 15")
        s(f"s_and_b32 {sG}, s2, 7")
        s(f"s_lshr_b32 {sR}, s2, 3")
        s(f"s_lshr_b32 {sB}, {sR}, 3")
        s(f"s_and_b32 {sJ}, {sR}, 7")
        s(f"s_lshl_b32 {sBLK}, {sG}, 2")
        s(f"s_add_u32 {sBLK}, {sBLK}, {sB}")
        s(f"s_lshl_b32 {sM0W}, {sW}, 12")
        s(f"s_mov_b32 {sBUD}, 0x80000")
        s(f"v_lshlrev_b32 {vL16}, 4, v0")
        s(f"v_mov_b32 {vZ}, 0")
        s("v_mov_b32 v3, 0")
        s(f"s_lshl_b32 {sT0}, {sR}, 2")
        s(f"s_add_u32 {sT0}, {sT0}, {sW}")
        s(f"s_mul_i32 {sT0}, {sT0}, 384")
        s("v_min_u32 v4, 2, v0")
        s("v_lshlrev_b32 v4, 7, v4")
        s(f"v_add_u32 v4, {sT0}, v4")
        s(f"v_min_u32 v4, CODE_BYTES, v4")
        s("global_load_dword v255, v4, s[96:97]")
        for q, (w2, w3, nb) in enumerate([("s10", "s11", 0x200000), ("s14", "s15", 0x180000), ("s18", "s19", 0x80000),
                                          ("s22", "s23", 0x1C0000), ("s26", "s27", 0x1C0000), ("s30", "s31", 0x1C0000),
                                          ("s34", "s35", 0x200000), ("s38", "s39", WS_BYTES)]):
            s(f"s_mov_b32 {w2}, {nb}")
            s(f"s_mov_b32 {w3}, 0x20000")
        s.ext(self.dma_voff(4, 2, 1024, 16, xmode=True))
        s.ext(self.dma_voff(6, 4, 3072, 16))
        s(f"s_mul_i32 {sCW}, {sW}, {16*3072}")
        s(f"s_lshl_b32 {sT0}, {sJ}, 7")
        s(f"s_add_u32 {sCW}, {sCW}, {sT0}")
        s(f"s_add_u32 {sCW}, {sCW}, 1024")
        s(f"s_lshl_b32 {sCX}, {sBLK}, 16")
        s(f"s_lshl_b32 {sT0}, {sW}, 14")
        s(f"s_add_u32 {sCX}, {sCX}, {sT0}")
        s(f"s_mov_b32 {sPAN}, {sJ}")
        s("s_waitcnt lgkmcnt(0)")
        for dst, src in (("s[8:9]", "s[80:81]"), ("s[12:13]", "s[82:83]"), ("s[16:17]", "s[84:85]"), ("s[20:21]", "s[88:89]"),
                         ("s[24:25]", "s[90:91]"), ("s[28:29]", "s[92:93]"), ("s[32:33]", "s[94:95]")):
            s(f"s_mov_b64 {dst}, {src}")
        s(f"s_lshl_b32 {sT0}, {sG}, 7")
        s(f"s_add_u32 {sT0}, {sT0}, {EPOCH}")
        s(f"s_sub_u32 {sT1}, {sG}, 1")
        s(f"s_max_i32 {sT1}, {sT1}, 0")
        s(f"s_lshl_b32 {sT1}, {sT1}, 7")
        s(f"s_add_u32 {sT1}, {sT1}, {EPOCH}")
        s(f"s_load_dwordx2 s[46:47], s[36:37], {sT0}")
        s(f"s_load_dwordx2 s[48:49], s[36:37], {sT1}")
        return s

    def prologue2(self):
        s = Seq()
        s(f"s_and_b32 {sT0}, {sW}, 1")
        s(f"s_lshl_b32 {sT0}, {sT0}, 13")
        s("v_bfe_u32 v16, v0, 4, 1")
        s("v_lshlrev_b32 v16, 12, v16")
        s("v_and_b32 v17, 15, v0")
        s("v_lshl_add_u32 v16, v17, 7, v16")
        s(f"v_add_u32 v16, {sT0}, v16")
        s("v_bfe_u32 v17, v0, 1, 3")
        s("v_lshrrev_b32 v18, 5, v0")
        s("v_xor_b32 v17, v17, v18")
        for q in range(4):
            s(f"v_xor_b32 v18, {2*q}, v17")
            s(f"v_lshl_add_u32 v{10+q}, v18, 4, v16")
        s.ext(self.tr32_addr(14, 16))
        s(f"s_lshr_b32 {sT0}, {sW}, 1")
        s(f"s_lshl_b32 {sT0}, {sT0}, 6")
        s(f"v_xor_b32 v14, {sT0}, v14")
        s("v_add_u32 v15, 0x10000, v14")
        s("v_and_b32 v16, 15, v0")
        s("v_lshrrev_b32 v17, 5, v0")
        s(f"s_lshl_b32 {sT0}, {sW}, 1")
        s(f"v_add_u32 v17, {sT0}, v17")
        s("v_bfe_u32 v18, v0, 1, 3")
        s("v_xor_b32 v17, v17, v18")
        s("v_lshlrev_b32 v17, 4, v17")
        s("v_lshl_add_u32 v23, v16, 7, v17")
        s("v_bfe_u32 v18, v0, 4, 1")
        s("v_lshl_add_u32 v23, v18, 3, v23")
        s.ext(self.selector(120))
        s("v_mov_b32 v124, 0")
        s("v_mov_b32 v125, 0")
        s(f"s_mul_i32 {sTAGlo}, {sTAGlo}, 1664525")
        s(f"s_add_u32 {sTAGlo}, {sTAGlo}, 1013904223")
        s(f"s_mul_i32 {sTAGhi}, {sTAGhi}, 22695477")
        s(f"s_add_u32 {sTAGhi}, {sTAGhi}, 0x9e3779b1")
        s(f"s_mul_i32 {sPTAGlo}, {sPTAGlo}, 1664525")
        s(f"s_add_u32 {sPTAGlo}, {sPTAGlo}, 1013904223")
        s(f"s_mul_i32 {sPTAGhi}, {sPTAGhi}, 22695477")
        s(f"s_add_u32 {sPTAGhi}, {sPTAGhi}, 0x9e3779b1")
        return s

    def stage_dma(self, n):
        slot = (n & 7) * 16384
        tok = f"st{n}"
        g = []
        if n < 8:
            a = Seq()
            a(f"s_add_u32 m0, {sM0W}, {slot}")
            a(f"s_lshl_b32 {sT0}, {sPAN}, 7")
            a(f"s_add_u32 {sT0}, {sT0}, {sCX}")
            a(f"buffer_load_dwordx4 v4, {SX}, {sT0} offen lds", tok=tok)
            g.append(a.l)
            g.append(Seq()(f"buffer_load_dwordx4 v5, {SX}, {sT0} offen offset:1024 lds", tok=tok).l)
            a = Seq()
            a(f"s_add_u32 m0, {sM0W}, {slot + 2048}")
            a(f"s_mul_i32 {sT0}, {sPAN}, {64*3072}")
            a(f"s_add_u32 {sT0}, {sT0}, {sCW}")
            a(f"buffer_load_dwordx4 v6, {SWQ}, {sT0} offen lds", tok=tok)
            g.append(a.l)
            a = Seq()
            a(f"buffer_load_dwordx4 v7, {SWQ}, {sT0} offen offset:1024 lds", tok=tok)
            a(f"s_add_u32 {sPAN}, {sPAN}, 1")
            a(f"s_and_b32 {sPAN}, {sPAN}, 7")
            g.append(a.l)
        elif n < 16:
            a = Seq()
            if n == 8 or n == 12:
                a(f"s_lshr_b32 {sT0}, {sW}, 1")
                a(f"s_add_u32 {sPAN}, {sJ}, {sT0}")
                a(f"s_and_b32 {sPAN}, {sPAN}, 7")
                a(f"s_and_b32 {sT0}, {sW}, 1")
                a(f"s_mul_i32 {sCW}, {sT0}, {32*3072}")
                a(f"s_lshl_b32 {sT0}, {sJ}, 7")
                a(f"s_add_u32 {sCW}, {sCW}, {sT0}")
                if n == 8:
                    a(f"s_add_u32 {sCW}, {sCW}, 2048")
            a(f"s_add_u32 m0, {sM0W}, {slot}")
            a(f"s_mul_i32 {sT0}, {sPAN}, {64*3072}")
            a(f"s_add_u32 {sT0}, {sT0}, {sCW}")
            a(f"buffer_load_dwordx4 v6, {SWQ}, {sT0} offen lds", tok=tok)
            g.append(a.l)
            for i in (1, 2, 3):
                a = Seq()
                a(f"buffer_load_dwordx4 v{6+i}, {SWQ}, {sT0} offen offset:{1024*i} lds", tok=tok)
                if i == 3:
                    a(f"s_add_u32 {sPAN}, {sPAN}, 2")
                    a(f"s_and_b32 {sPAN}, {sPAN}, 7")
                g.append(a.l)
        elif n < 20:
            a = Seq()
            if n == 16:
                a.ext(self.dma_voff(6, 4, 1024, 20))
                a(f"s_lshl_b32 {sCW}, {sW}, 15")
                a(f"s_lshl_b32 {sT0}, {sJ}, 7")
                a(f"s_add_u32 {sCW}, {sCW}, {sT0}")
            a(f"s_add_u32 m0, {sM0W}, {slot}")
            a(f"s_add_u32 {sT0}, {sCW}, {(n-16)*128*1024}")
            a(f"buffer_load_dwordx4 v6, {SWO}, {sT0} offen lds", tok=tok)
            g.append(a.l)
            for i in (1, 2, 3):
                g.append(Seq()(f"buffer_load_dwordx4 v{6+i}, {SWO}, {sT0} offen offset:{1024*i} lds", tok=tok).l)
        else:
            c = n - 20
            a = Seq()
            a(f"s_add_u32 m0, {sM0W}, {slot}")
            a(f"s_add_u32 {sT5}, {sGU}, {c*64*3584}")
            a(f"buffer_load_dwordx4 v4, {SWG}, {sT5} offen lds", tok=tok)
            g.append(a.l)
            g.append(Seq()(f"buffer_load_dwordx4 v5, {SWG}, {sT5} offen offset:1024 lds", tok=tok).l)
            a = Seq()
            a(f"s_add_u32 m0, {sM0W}, {slot + 2048}")
            a(f"buffer_load_dwordx4 v4, {SWU}, {sT5} offen lds", tok=tok)
            g.append(a.l)
            g.append(Seq()(f"buffer_load_dwordx4 v5, {SWU}, {sT5} offen offset:1024 lds", tok=tok).l)
        return g

    def gu_setup(self):
        s = Seq()
        s.ext(self.dma_voff(4, 2, 3584, 20))
        s(f"s_min_u32 {sT0}, {sR}, 27")
        s(f"s_lshl_b32 {sGU}, {sT0}, 7")
        s(f"s_mul_i32 {sT0}, {sW}, {16*3584}")
        s(f"s_add_u32 {sGU}, {sGU}, {sT0}")
        return s

    def p1(self):
        p = self.p
        D = p["dist"]
        X, AK, AV, AQ, WR = 128, 32, 48, 64, 80
        XS, CS = 112, 116
        SEL = vr(120, 4)
        s = Seq()
        for n in range(D):
            for g in self.stage_dma(n):
                s.ext(g)
        s.ext(self.prologue2())
        s.ext(self.stamp("issued"))

        def wfrag(k):
            return WR + 4 * (k % 8)

        def rd_w(k, n, off):
            q = Seq()
            slot = (n & 7) * 16384
            base = "v14" if slot < 0x10000 else "v15"
            o = (slot & 0xFFFF) + off
            q(f"ds_read_b64_tr_b16 {vr(wfrag(k),2)}, {base} offset:{o}")
            q(f"ds_read_b64_tr_b16 {vr(wfrag(k)+2,2)}, {base} offset:{o+512}")
            return q

        kk = 0
        for n in range(8):
            s("s_barrier", need=f"st{n}")
            if n == 4:
                for q in range(4):
                    s(f"v_add_u32 v{10+q}, 0x10000, v{10+q}")
            slot = ((n & 7) * 16384) & 0xFFFF
            for q in range(4):
                s(f"ds_read_b128 {vr(X+16*n+4*q,4)}, v{10+q} offset:{slot}")
                s.ext(rd_w(kk + q, n, q * 4096 + 2048))
            if n == 0:
                for u in range(4):
                    s(f"ds_read_b64 {vr(vXR+2*u,2)}, v23 offset:{u*4096}")
            for g in self.stage_dma(n + D):
                s.ext(g)
            for q in range(4):
                xf, wf = vr(X + 16 * n + 4 * q, 4), vr(wfrag(kk + q), 4)
                first = n == 0 and q == 0
                s(mf32(AK, wf, xf, "0" if first else None))
                s(mf16(XS, SEL, xf, "0" if first else None))
                s(mf16(CS, SEL, wf, "0" if first else None))
            for i in range(16):
                r = vr(X + 16 * n + i)
                s(f"v_dot2c_f32_bf16 v{124 + (i & 1)}, {r}, {r}")
            kk += 4
        s.ext(self.stamp("kpass"))
        st = Seq()
        st("v_add_f32 v124, v124, v125")
        st("v_mov_b32 v125, v124")
        st("v_permlane32_swap_b32 v124, v125")
        st("v_add_f32 v124, v124, v125")
        st(f"v_mul_f32 v125, {1.0/512!r}, v{XS}")
        st(f"v_mul_f32 v124, {1.0/512!r}, v124")
        st("v_fma_f32 v124, -v125, v125, v124")
        st("v_max_f32 v124, 0, v124")
        st("v_add_f32 v124, 0x3727c5ac, v124")
        st("v_rsq_f32 v126, v124")
        st("v_mul_f32 v125, -0.5, v125")
        st.ext(self.split_first("v125", 16, 127))
        st("v_mov_b32 v18, 0")
        st("v_mov_b32 v19, 0")
        st("v_mov_b32 v114, 0")
        st("v_mov_b32 v115, 0")
        s.ext(st)

        def rank1(acc, transposed):
            q = Seq()
            q.ext(self.split_second(f"v{CS}", 112, 127))
            if transposed:
                q(mf32(acc, vr(112, 4), vr(16, 4)))
            else:
                q(mf32(acc, vr(16, 4), vr(112, 4)))
            return q

        ad = Seq()
        ad(f"s_and_b32 {sT2}, {sW}, 1")
        ad(f"s_lshr_b32 {sT3}, {sW}, 1")
        ad(f"s_lshl_b32 {sT4}, {sT3}, 2")
        ad(f"s_add_u32 {sT4}, {sT4}, {sT2}")
        ad(f"s_lshl_b32 {sT4}, {sT4}, 10")
        ad(f"s_add_u32 {sT4}, {sT4}, {R3}")
        ad(f"v_add_u32 v10, {sT4}, {vL16}")
        ad("v_and_b32 v11, 15, v0")
        ad("v_lshlrev_b32 v11, 4, v11")
        ad("v_lshrrev_b32 v12, 5, v0")
        ad("v_lshl_add_u32 v11, v12, 8, v11")
        ad("v_bfe_u32 v13, v0, 4, 1")
        ad("v_lshl_add_u32 v12, v13, 11, v11")
        ad(f"v_add_u32 v12, {sT4}, v12")
        ad("v_lshl_add_u32 v13, v13, 16, v11")
        ad(f"s_lshl_b32 {sST}, {sJ}, 1")
        ad(f"s_add_u32 {sST}, {sST}, {sT3}")
        ad(f"s_lshl_b32 {sFL}, {sST}, 6")
        ad(f"s_lshl_b32 {sST}, {sST}, 7")
        ad(f"s_lshl_b32 {sT4}, {sBLK}, 1")
        ad(f"s_add_u32 {sT4}, {sT4}, {sT2}")
        ad(f"s_add_u32 {sST}, {sST}, {sT4}")
        ad(f"s_lshl_b32 {sST}, {sST}, 10")
        ad(f"s_add_u32 {sFL}, {sFL}, {sT4}")
        ad(f"s_mul_i32 {sFL}, {sFL}, {p['kvfs']}")
        ad(f"s_add_u32 {sFL}, {sFL}, {KFL}")
        ad(f"s_and_b32 {sT4}, {sTAGhi}, -16")
        ad(f"s_or_b32 {sT4}, {sT4}, {sXCC}")
        ad(f"v_mov_b32 v124, {sTAGlo}")
        ad(f"v_mov_b32 v125, {sT4}")
        s.ext(rank1(AK, True))
        s.ext(ad)

        def scale_pack(acc, mul):
            q = Seq()
            for i in range(8):
                q(f"v_mul_f32 {vr(acc+2*i)}, {mul(2*i)}, {vr(acc+2*i)}")
                q(f"v_mul_f32 {vr(acc+2*i+1)}, {mul(2*i+1)}, {vr(acc+2*i+1)}")
                q(f"v_cvt_pk_bf16_f32 {vr(acc+i)}, {vr(acc+2*i)}, {vr(acc+2*i+1)}")
            return q

        epK = scale_pack(AK, lambda i: "v126")
        epK(f"s_add_u32 {sT4}, {sST}, 0x10000")
        epK(f"buffer_store_dwordx4 {vr(AK,4)}, {vL16}, {SWS}, {sST} offen sc1", tok="kst")
        epK(f"buffer_store_dwordx4 {vr(AK+4,4)}, {vL16}, {SWS}, {sT4} offen sc1", tok="kst")
        epK(f"ds_write_b128 v10, {vr(AK,4)} offset:8192", tok="exw")
        epK(f"ds_write_b128 v10, {vr(AK+4,4)} offset:{8192+2048}", tok="exw")
        flK = Seq()(f"buffer_store_dwordx2 v[124:125], {vZ}, {SWS}, {sFL} offen sc1", need="kst")
        rb = Seq()
        rb("v_mul_f32 v127, 0.5, v126")
        rb("v_cvt_pk_bf16_f32 v21, v127, 0")
        rb("v_lshlrev_b32 v21, 16, v21")
        rb("v_sub_f32 v21, v127, v21")
        rb("v_cvt_pk_bf16_f32 v20, v127, v21")
        rb("v_mov_b32 v21, 0")
        rb("v_mov_b32 v22, 0")
        rb("v_mov_b32 v23, 0")
        rb("v_mov_b32 v112, 0x3f803f80")
        rb("v_mov_b32 v113, 0")
        rb(mf32(AK, vr(20, 4), vr(112, 4), "0"))
        epV = scale_pack(AV, lambda i: vr(AK + i))
        epV(f"s_add_u32 {sT4}, {sST}, {VBUF}")
        epV(f"buffer_store_dwordx4 {vr(AV,4)}, v13, {SWS}, {sT4} offen sc1", tok="vst")
        epV(f"buffer_store_dwordx4 {vr(AV+4,4)}, v13, {SWS}, {sT4} offen offset:512 sc1", tok="vst")
        epV(f"ds_write_b128 v12, {vr(AV,4)} offset:16384", tok="exw")
        epV(f"ds_write_b128 v12, {vr(AV+4,4)} offset:{16384+512}", tok="exw")
        flV = Seq()
        flV(f"s_add_u32 {sT4}, {sFL}, {VFL-KFL}")
        flV(f"buffer_store_dwordx2 v[124:125], {vZ}, {SWS}, {sT4} offen sc1", need="vst")

        for n in range(8, 16):
            isV = n < 12
            acc = AV if isV else AQ
            u = (n - 8) & 3
            s("s_barrier", need=f"st{n}")
            for q in range(4):
                s.ext(rd_w(kk + q, n, q * 2048))
            m = Seq()
            for q in range(8):
                xf, wf = vr(X + 32 * u + 4 * q, 4), vr(wfrag(kk + q), 4)
                first = u == 0 and q == 0
                m(mf32(acc, xf, wf, "0" if first else None) if isV else mf32(acc, wf, xf, "0" if first else None))
                m(mf16(CS, SEL, wf, "0" if first else None))
                if q < 4:
                    m.ext(rd_w(kk + 4 + q, n, (4 + q) * 2048))
            fill = list(self.stage_dma(n + D)) if n + D < 20 else []
            if n == 8:
                fill += groups(epK, 3)
            if n == 10:
                fill += groups(rb, 2)
            if n == 11:
                fill += [flK.l]
            if n == 12:
                fill += groups(epV, 3)
            if n == 15:
                fill += [flV.l]
            s.ext(weave(m, fill))
            kk += 8
            if n == 11:
                s.ext(rank1(AV, False))
                s.ext(self.stamp("vpass"))
        s.ext(rank1(AQ, True))
        for n in range(16 + D, 20):
            for g in self.stage_dma(n):
                s.ext(g)
        s(f"v_mul_f32 v127, {0.25*1.4426950408889634!r}, v126")
        self.attn_setup_early(s)
        epQ = scale_pack(AQ, lambda i: "v127")
        epQ(f"ds_write_b128 v10, {vr(AQ,4)}", tok="exw")
        epQ(f"ds_write_b128 v10, {vr(AQ+4,4)} offset:2048", tok="exw")
        s.ext(epQ)
        s.ext(self.stamp("qpass"))
        return s

    def attn_setup_early(self, s):
        p = self.p
        fs = p["kvfs"]
        s(f"s_lshl_b32 {sT0}, {sBLK}, 1")
        s(f"s_sub_u32 {sT0}, {sT0}, 8")
        s("v_min_u32 v16, 7, v0")
        s(f"v_add_u32 v16, {sT0}, v16")
        s("v_max_i32 v16, 0, v16")
        s(f"s_lshl_b32 {sT1}, {sG}, 3")
        s(f"v_cmp_gt_u32 vcc, {sT1}, v16")
        s(f"s_or_b32 {sT2}, {sTAGhi}, 15")
        s(f"s_or_b32 {sT3}, {sPTAGhi}, 15")
        s(f"s_and_b32 vcc_hi, vcc_hi, 0")
        s(f"v_mov_b32 v18, {sTAGlo}")
        s(f"v_mov_b32 v19, {sT2}")
        s(f"v_mov_b32 v20, {sPTAGlo}")
        s(f"v_mov_b32 v21, {sT3}")
        s("v_cndmask_b32 v18, v18, v20, vcc")
        s("v_cndmask_b32 v19, v19, v21, vcc")
        s(f"s_lshl_b32 {sT2}, {sJ}, 1")
        s(f"s_lshr_b32 {sT3}, {sW}, 1")
        s(f"s_add_u32 {sT2}, {sT2}, {sT3}")
        s(f"s_lshl_b32 {sT2}, {sT2}, 6")
        s(f"v_add_u32 v16, {sT2}, v16")
        s("v_and_b32 v17, 7, v0")
        s("v_lshlrev_b32 v17, 7, v17")
        s("v_bfe_u32 v20, v0, 3, 2")
        s("v_lshl_add_u32 v17, v20, 1, v17")
        s(f"v_add_u32 v17, {sT1}, v17")
        s("v_cmp_lt_u32 vcc, 31, v0")
        s("v_cndmask_b32 v16, v16, v17, vcc")
        s(f"v_mul_u32_u24 v16, {fs}, v16")
        s(f"s_lshl_b32 {sT2}, {sJ}, 2")
        s(f"s_add_u32 {sT2}, {sT2}, {sW}")
        s(f"s_lshl_b32 {sT2}, {sT2}, 6")
        s(f"s_add_u32 {sT2}, {sT2}, {sT0}")
        s(f"s_lshl_b32 {sT2}, {sT2}, 10")
        for i in range(4):
            s(f"s_add_u32 {sT3}, {sT2}, {2048*i}")
            s(f"s_cmp_ge_u32 {sBLK}, {4-i}")
            s(f"s_cselect_b32 {sKV[i]}, {sT3}, {BIGOFF}")
            s(f"s_cselect_b32 {sONE[i]}, 0x3f803f80, 0")
        s(f"s_mov_b32 s68, 0x0000ffff")
        s(f"s_mov_b32 s69, 0x0000ffff")
        s(f"s_mov_b32 {sT4}, {KFL}")
        s.ext(self.poll_issue(112, "v16", sT4))

    def tile(self, kt, q, S, O, first, masked, nxt):
        K, V, P = 128, 168, 112 + 4
        s = Seq()
        if nxt is not None:
            s.ext(nxt)
        for half in range(2):
            for i in range(8):
                r = S + 8 * half + i
                s(f"v_exp_f32 {vr(r)}, {vr(r)}")
                if half == 1 and i == 1:
                    s(mf32(O, vr(V + 8 * kt, 4), vr(P, 4), "0" if first else None))
            for i in range(4):
                r = S + 8 * half + 2 * i
                s(f"v_cvt_pk_bf16_f32 {vr(P + 4*half + i)}, {vr(r)}, {vr(r+1)}")
        pv1 = Seq()(mf32(O, vr(V + 8 * kt + 4, 4), vr(P + 4, 4)))
        return s, pv1

    def qk(self, kt, q, S, masked):
        K, Q, M = 128, 248, 96
        return Seq()(mf32(S, vr(K + 4 * kt, 4), vr(Q + 4 * q, 4), vr(M, 16) if masked else "0"))

    def run_tiles(self, lst, hooks, pre_qk_done=False):
        S = (32, 48)
        O = (64, 80)
        s = Seq()
        if not pre_qk_done:
            kt, q, f, mk = lst[0]
            s.ext(self.qk(kt, q, S[0], mk))
        pend = None
        for i, (kt, q, f, mk) in enumerate(lst):
            if i in hooks:
                s.ext(hooks[i])
            nxt = None
            if i + 1 < len(lst):
                a = lst[i + 1]
                nxt = self.qk(a[0], a[1], S[(i + 1) & 1], a[3])
            body, pv1 = self.tile(kt, q, S[i & 1], O[q], f, mk, nxt)
            if pend is not None:
                k = 3 if nxt is not None else 2
                body.l = body.l[:k] + pend.l + body.l[k:]
            s.ext(body)
            pend = pv1
        s.ext(pend)
        return s

    def slow_softmax(self, q, back):
        K, V, Q, P = 128, 168, 248, 116
        S, C, O, M = 32, 48, (64, 80)[q], 96
        lab = self.lab("slow")
        t = Seq()
        t(f"{lab}:")
        t("s_nop 15")
        tiles = list(range(q, q + 9))

        def guarded(kt, body):
            if kt >= 8:
                t.ext(body)
                return
            skip = self.lab("skip")
            t(f"s_cmp_eq_u32 {sONE[kt >> 1]}, 0")
            t(f"s_cbranch_scc1 {skip}")
            t.ext(body)
            t("s_nop 15")
            t(f"{skip}:")

        def bias(kt, base):
            b = Seq()
            for i in range(16):
                if kt == q:
                    b(f"v_add_f32 {vr(C+i)}, {vr(M+i)}, {base}")
                elif kt == q + 8:
                    b(f"v_sub_f32 {vr(C+i)}, 0xf149f2ca, {vr(M+i)}")
                    b(f"v_add_f32 {vr(C+i)}, {vr(C+i)}, {base}")
                else:
                    b(f"v_mov_b32 {vr(C+i)}, {base}")
            return b
        t("v_mov_b32 v112, 0xff7fffff")
        for kt in tiles:
            b = bias(kt, vZ)
            b(mf32(S, vr(K + 4 * kt, 4), vr(Q + 4 * q, 4), vr(C, 16)))
            for i in range(0, 16, 2):
                b(f"v_max3_f32 v112, {vr(S+i)}, {vr(S+i+1)}, v112")
            guarded(kt, b)
        t("v_mov_b32 v113, v112")
        t("v_permlane32_swap_b32 v112, v113")
        t("v_max_f32 v112, v112, v113")
        t("v_sub_f32 v112, 0, v112")
        for i in range(16):
            t(f"v_mov_b32 {vr(O+i)}, 0")
        for kt in tiles:
            b = bias(kt, "v112")
            b(mf32(S, vr(K + 4 * kt, 4), vr(Q + 4 * q, 4), vr(C, 16)))
            for i in range(16):
                b(f"v_exp_f32 {vr(S+i)}, {vr(S+i)}")
            for i in range(8):
                b(f"v_cvt_pk_bf16_f32 {vr(P+i)}, {vr(S+2*i)}, {vr(S+2*i+1)}")
            b(mf32(O, vr(V + 8 * kt, 4), vr(P, 4)))
            b(mf32(O, vr(V + 8 * kt + 4, 4), vr(P + 4, 4)))
            guarded(kt, b)
        t("s_nop 15")
        t(f"s_branch {back}")
        self.tail.append(t)
        return lab

    def finish_o(self, q):
        O = (64, 80)[q]
        back = self.lab("att")
        slow = self.slow_softmax(q, back)
        s = Seq()
        s(f"v_cmp_nge_f32 vcc, 0x53800000, {vr(O+8)}")
        s(f"s_mov_b32 {sT0}, 0x2b800000")
        s(f"v_cmp_nle_f32 {sEX}, {sT0}, {vr(O+8)}")
        s(f"s_or_b64 vcc, vcc, {sEX}")
        if self.p["force_slow"]:
            s(f"s_branch {slow}")
        else:
            s(f"s_cbranch_scc1 {slow}")
        s(f"{back}:")
        s(f"v_rcp_f32 {vr(O+8)}, {vr(O+8)}")
        for i in range(4):
            s(f"v_mul_f32 {vr(O+2*i)}, {vr(O+8)}, {vr(O+2*i)}")
            s(f"v_mul_f32 {vr(O+2*i+1)}, {vr(O+8)}, {vr(O+2*i+1)}")
            s(f"v_cvt_pk_bf16_f32 {vr(O+i)}, {vr(O+2*i)}, {vr(O+2*i+1)}")
        s(f"s_add_u32 {sT0}, {sST}, {q*32768}")
        s(f"buffer_store_dwordx4 {vr(O,4)}, {vL16}, {SWS}, {sT0} offen {self.p['st_local']}", tok=f"ost{q}")
        return s

    def o_dma(self, q):
        base = R3 if q == 0 else 2 * 16384
        g = []
        for hf in range(2):
            a = Seq()
            a(f"s_add_u32 m0, {sM0W}, {base + hf*16384}")
            a(f"s_add_u32 {sT0}, {sHA}, {q*32768 + hf*16384}")
            for i in range(4):
                a(f"buffer_load_dwordx4 {vL16}, {SWS}, {sT0} offen offset:{1024*i} sc1 lds", tok=f"od{q}{hf}")
            g.append(a)
        return g

    def attention(self):
        p = self.p
        K, V, Q, M = 128, 168, 248, 96
        s = Seq()
        for kt in range(10):
            src = sONE[kt >> 1] if kt < 8 else "0x3f803f80"
            for i in range(8):
                s(f"v_mov_b32 {vr(V+8*kt+i)}, {src}")
        s("v_and_b32 v20, 31, v0")
        s("v_lshrrev_b32 v21, 5, v0")
        s("v_lshlrev_b32 v21, 2, v21")
        s("v_sub_u32 v20, v20, v21")
        s("v_mov_b32 v21, 0xf149f2ca")
        for r in range(16):
            s(f"v_cmp_gt_i32 vcc, {8*(r>>2) + (r&3)}, v20")
            s(f"v_cndmask_b32 {vr(M+r)}, 0, v21, vcc")
        s(f"s_lshl_b32 {sT0}, {sW}, 11")
        s(f"s_add_u32 {sT0}, {sT0}, {R3}")
        s(f"v_add_u32 v10, {sT0}, {vL16}")
        s(f"v_add_u32 v12, {sT0}, v11")
        s(f"v_add_u32 v11, {VBUF}, v11")
        s("s_barrier", need="exw")
        s(f"ds_read_b128 {vr(Q,4)}, v10")
        s(f"ds_read_b128 {vr(K+32,4)}, v10 offset:8192")
        s(f"ds_read_b128 {vr(Q+4,4)}, v10 offset:1024")
        s(f"ds_read_b128 {vr(K+36,4)}, v10 offset:{8192+1024}")
        s(f"s_mov_b64 exec, {sVMASK}")
        for i in range(4):
            s(f"ds_read_b128 {vr(V+64+4*i,4)}, v12 offset:{16384+512*i}")
        s("s_mov_b64 exec, -1")
        s.ext(self.stamp("exch"))

        hK = Seq()
        hK(f"s_mov_b32 {sT4}, {KFL}")
        hK.ext(self.poll_check(112, "v16", sT4, expect=18, inv=False))
        hK("v_and_b32 v113, 15, v113")
        hK(f"v_cmp_ne_u32 vcc, {sXCC}, v113")
        hK(f"s_cmp_eq_u32 vcc_hi, 0")
        hK(f"s_cselect_b32 {sLOCAL}, {0 if p['force_safe'] else 1}, 0")
        for kt in range(8):
            hK(f"buffer_load_dwordx4 {vr(K+4*kt,4)}, {vL16}, {SWS}, {sKV[kt>>1]} offen offset:{1024*(kt&1)} sc1")
        hK(f"s_mov_b32 {sT4}, {VFL}")
        hK.ext(self.poll_issue(112, "v16", sT4))
        hV = Seq()
        hV(f"s_mov_b32 {sT4}, {VFL}")
        hV.ext(self.poll_check(112, "v16", sT4, expect=18, inv=False))
        hV(f"s_mov_b64 exec, {sVMASK}")
        for kt in range(8):
            for st in range(2):
                hV(f"buffer_load_dwordx4 {vr(V+8*kt+4*st,4)}, v11, {SWS}, {sKV[kt>>1]} offen offset:{1024*(kt&1)+512*st} sc1")
        hV("s_mov_b64 exec, -1")
        s.ext(self.run_tiles([(8, 0, True, True), (8, 1, True, False), (9, 1, False, True)], {1: hK, 2: hV}))
        s.ext(self.stamp("own"))
        for r in range(16):
            s(f"v_sub_f32 {vr(M+r)}, 0xf149f2ca, {vr(M+r)}")
        s("v_bfe_u32 v20, v0, 2, 2")
        s("v_lshrrev_b32 v21, 4, v0")
        s("v_lshl_add_u32 v14, v21, 3, v20")
        s("v_lshlrev_b32 v14, 7, v14")
        s("v_lshrrev_b32 v20, 1, v20")
        s("v_and_b32 v21, 1, v21")
        s("v_lshl_add_u32 v20, v20, 1, v21")
        s(f"v_xor_b32 v20, {sW}, v20")
        s("v_lshl_add_u32 v14, v20, 5, v14")
        s("v_and_b32 v20, 3, v0")
        s("v_lshl_add_u32 v14, v20, 3, v14")
        s("s_barrier", need=("st16", "st17", "st18", "st19"))
        for k in range(16):
            s(f"ds_read_b64_tr_b16 {ar(192+4*k,2)}, v14 offset:{4096*k}", tok="wo")
            s(f"ds_read_b64_tr_b16 {ar(192+4*k+2,2)}, v14 offset:{4096*k+512}", tok="wo")
        s.ext(self.gu_setup())
        s(f"s_lshl_b32 {sT0}, {sBLK}, 6")
        s(f"s_lshl_b32 {sT1}, {sJ}, 2")
        s(f"s_add_u32 {sT1}, {sT1}, {sW}")
        s(f"s_add_u32 {sT0}, {sT0}, {sT1}")
        s(f"s_lshl_b32 {sST}, {sT0}, 10")
        s(f"s_add_u32 {sST}, {sST}, {OBUF}")
        s(f"s_lshl_b32 {sFL}, {sT0}, 3")
        s(f"s_add_u32 {sFL}, {sFL}, {OFL}")
        s(f"s_lshl_b32 {sHA}, {sBLK}, 16")
        s(f"s_add_u32 {sHA}, {sHA}, {sM0W}")
        s(f"s_add_u32 {sHA}, {sHA}, {OBUF}")
        s(f"v_mov_b32 v124, {sTAGlo}")
        s(f"v_mov_b32 v125, {sTAGhi}")
        s("v_and_b32 v16, 3, v0")
        s("v_bfe_u32 v17, v0, 2, 1")
        s("v_lshl_add_u32 v16, v17, 4, v16")
        s(f"s_lshl_b32 {sT0}, {sW}, 2")
        s(f"v_add_u32 v16, {sT0}, v16")
        s("v_lshlrev_b32 v16, 3, v16")
        s(f"s_lshl_b32 {sHB}, {sBLK}, 9")
        s(f"s_add_u32 {sHB}, {sHB}, {OFL}")
        hooksA = {}
        ng = p["gu_early"]
        if ng >= 1:
            hooksA[0] = Seq().ext([i for g in self.stage_dma(20) for i in g])
        s.ext(self.run_tiles([(kt, 0, False, kt == 0) for kt in (7, 6, 5, 4, 3, 2, 1, 0)], hooksA))
        s.ext(self.finish_o(0))
        s.ext(self.stamp("attA"))
        hooksB = {}
        hooksB[2] = self.publish("ost0", sFL, 124)
        hooksB[4] = self.poll_issue(112, "v16", sHB)
        h = Seq()
        h.ext(self.poll_check(112, "v16", sHB))
        for a in self.o_dma(0):
            h.ext(a)
        for c in range(1, ng):
            h.ext([i for g in self.stage_dma(20 + c) for i in g])
        hooksB[6] = h
        s.ext(self.run_tiles([(kt, 1, False, kt == 1) for kt in (7, 6, 5, 4, 3, 2, 1)], hooksB))
        s.ext(self.finish_o(1))
        s.ext(self.stamp("attB"))
        return s

    def wo_phase(self):
        p = self.p
        s = Seq()
        AC, F = 32, 64
        s("v_lshrrev_b32 v20, 4, v0")
        s("v_and_b32 v21, 15, v0")
        s("v_lshlrev_b32 v21, 4, v21")
        s("v_lshl_add_u32 v10, v20, 9, v21")
        s(f"v_add_u32 v11, {R3}, v10")
        for q in range(2):
            for u in range(2):
                src = vXR + 4 * q + 2 * u
                d = AC + 8 * q + 4 * u
                s(f"v_lshlrev_b32 {vr(d)}, 16, {vr(src)}")
                s(f"v_and_b32 {vr(d+1)}, 0xffff0000, {vr(src)}")
                s(f"v_lshlrev_b32 {vr(d+2)}, 16, {vr(src+1)}")
                s(f"v_and_b32 {vr(d+3)}, 0xffff0000, {vr(src+1)}")
        for q in range(2):
            base, off0 = ("v11", 0) if q == 0 else ("v10", 2 * 16384)
            if q == 1:
                s(f"s_add_u32 {sT4}, {sHB}, 256")
                s.ext(self.poll_issue(112, "v16", sT4))
                s(f"s_add_u32 {sT3}, {sFL}, {HFL-OFL}")
                s.ext(self.publish("hst0", sT3, 124))
                s.ext(self.poll_check(112, "v16", sT4))
                for a in self.o_dma(1):
                    s.ext(a)
                s.ext(self.p3_setup())
            m = Seq()
            NB = 12

            def rd(i):
                return f"ds_read_b128 {vr(F+4*(i % NB),4)}, {base} offset:{off0 + (i>>1)*2048 + (i&1)*256}"
            for hf in range(2):
                m("s_barrier", need=(f"od{q}{hf}", "wo"))
                lo = 16 * hf
                for i in range(lo, lo + 8):
                    m(rd(i))
                for i in range(lo, lo + 16):
                    m(mf16(AC + 8 * q + 4 * (i & 1), ar(192 + 4 * (i >> 1), 4), vr(F + 4 * (i % NB), 4)))
                    if i + 8 < lo + 16:
                        m(rd(i + 8))
            if q == 0:
                t = Seq()
                t(f"s_add_u32 {sT4}, {sFL}, 256")
                t.ext(self.publish("ost1", sT4, 124))
                m = weave(m, [t.l], start=10, end=11)
            s.ext(m)
            d, hp = AC + 8 * q, vXR + 4 * q
            s(f"v_cvt_pk_bf16_f32 {vr(hp)}, {vr(d)}, {vr(d+1)}")
            s(f"v_cvt_pk_bf16_f32 {vr(hp+1)}, {vr(d+2)}, {vr(d+3)}")
            s(f"v_cvt_pk_bf16_f32 {vr(hp+2)}, {vr(d+4)}, {vr(d+5)}")
            s(f"v_cvt_pk_bf16_f32 {vr(hp+3)}, {vr(d+6)}, {vr(d+7)}")
            s(f"s_add_u32 {sT0}, {sST}, {HBUF - OBUF + q*32768}")
            s(f"v_permlane16_swap_b32 {vr(hp)}, {vr(hp+2)}")
            s(f"v_permlane16_swap_b32 {vr(hp+1)}, {vr(hp+3)}")
            s(f"buffer_store_dwordx4 {vr(hp,4)}, {vL16}, {SWS}, {sT0} offen {p['st_local']}", tok=f"hst{q}")
            s.ext(self.stamp(f"wo{q}"))
        return s

    def p3_setup(self):
        s = Seq()
        s.ext(self.tr32_addr(17, 20))
        s(f"s_and_b32 {sT0}, {sW}, 1")
        s(f"s_lshl_b32 {sT0}, {sT0}, 11")
        s(f"s_lshr_b32 {sT1}, {sW}, 1")
        s(f"s_lshl_b32 {sT1}, {sT1}, 6")
        s(f"s_or_b32 {sT0}, {sT0}, {sT1}")
        s(f"s_or_b32 {sT0}, {sT0}, 0x10000")
        s(f"v_xor_b32 v12, {sT0}, v17")
        s("v_xor_b32 v13, 0x800, v12")
        s("v_xor_b32 v14, 64, v12")
        s("v_xor_b32 v15, 0x840, v12")
        s(f"s_lshl_b32 {sT0}, {sW}, 5")
        s(f"v_xor_b32 v17, {sT0}, v17")
        s(f"s_lshl_b32 {sM0D}, {sW}, 13")
        s(f"v_add_u32 v17, {sM0D}, v17")
        s("v_xor_b32 v18, 64, v17")
        s("v_and_b32 v19, 31, v0")
        s("v_lshlrev_b32 v19, 3, v19")
        s(f"s_mul_i32 {sWDN}, {sW}, {448*1024}")
        s(f"s_lshl_b32 {sT0}, {sJ}, 7")
        s(f"s_add_u32 {sWDN}, {sWDN}, {sT0}")
        s.ext(self.selector(120))
        return s

    def wd_dma(self, c, slot):
        g = []
        prev = self.wd_owner.get(slot)
        self.wd_owner[slot] = c
        self.wd_slot[c] = slot
        for hf in range(2):
            a = Seq()
            a(f"s_add_u32 m0, {sM0D}, {slot + hf*4096}", need=(f"wdr{prev}",) if (prev is not None and hf == 0) else ())
            a(f"s_add_u32 {sT3}, {sWDN}, {(c*64 + hf*32)*1024}")
            a(f"buffer_load_dwordx4 v6, {SWD}, {sT3} offen lds", tok=f"wd{c}")
            g.append(a.l)
            for i in (1, 2, 3):
                g.append(Seq()(f"buffer_load_dwordx4 v{6+i}, {SWD}, {sT3} offen offset:{1024*i} lds", tok=f"wd{c}").l)
        return g

    def wd_drain(self, c):
        g = []
        slot = self.wd_slot[c]
        hi = slot & ~0xFFFF
        if hi != self.wd_hi:
            a = Seq()
            a(f"v_xor_b32 v17, {hi ^ self.wd_hi}, v17")
            a(f"v_xor_b32 v18, {hi ^ self.wd_hi}, v18")
            g.append(a.l)
            self.wd_hi = hi
        for k in range(4):
            for ct in range(2):
                d = 32 * c + 8 * k + 4 * ct
                for jj in range(2):
                    g.append(Seq()(f"ds_read_b64_tr_b16 {ar(d+2*jj,2)}, v{17+ct} offset:{(slot & 0xFFFF) + 2048*k + 512*jj}",
                                   tok=f"wdr{c}", need=f"wd{c}").l)
        return g

    def wd_reset(self):
        self.wd_owner, self.wd_slot, self.wd_hi = {}, {}, 0

    def wd_events(self, key):
        g = []
        for ev in self.p["wd"].get(key, ()):
            g += self.wd_dma(ev[1], ev[2]) if ev[0] == "dma" else self.wd_drain(ev[1])
        return g

    def p4_setup(self):
        s = Seq()
        s(f"s_mul_i32 {sAA}, {sBLK}, {2*112*1024}")
        s(f"s_mul_i32 {sT0}, {sW}, {28*1024}")
        s(f"s_add_u32 {sAA}, {sAA}, {sT0}")
        s(f"s_add_u32 {sAA}, {sAA}, {ACT}")
        s(f"s_lshl_b32 {sAB}, {sBLK}, 9")
        s(f"s_mul_i32 {sT0}, {sW}, 56")
        s(f"s_add_u32 {sAB}, {sAB}, {sT0}")
        s(f"s_add_u32 {sAB}, {sAB}, {AFL}")
        s("v_min_u32 v16, 6, v0")
        s("v_lshlrev_b32 v16, 3, v16")
        return s

    RING, NR = 64, 13

    def ring(self, i):
        return self.RING + 4 * (i % self.NR)

    def act_load(self, i):
        q, k = divmod(i, 28)
        a = Seq()
        if k % 4 == 0:
            a(f"s_add_u32 {sT2}, {sAA}, {q*112*1024 + k*1024}")
        a(f"buffer_load_dwordx4 {vr(self.ring(64+i),4)}, {vL16}, {SWS}, {sT2} offen offset:{1024*(k%4)} sc1")
        return a.l

    def stats_load(self, with_mu):
        s = Seq()
        s("v_min_u32 v20, 7, v0")
        s("v_lshlrev_b32 v20, 3, v20")
        s(f"s_lshl_b32 {sT4}, {sG}, 7")
        s(f"s_add_u32 {sT4}, {sT4}, {SFL}")
        s.ext(self.poll_issue(22, "v20", sT4))
        t = Seq()
        t(f"s_lshl_b32 {sT4}, {sG}, 7")
        t(f"s_add_u32 {sT4}, {sT4}, {SFL}")
        t.ext(self.poll_check(22, "v20", sT4))
        t(f"s_lshl_b32 {sT4}, {sBLK}, 9")
        t(f"s_add_u32 {sT4}, {sT4}, {STATS}")
        t(f"buffer_load_dword v10, v19, {SWS}, {sT4} offen offset:4 sc1")
        t(f"buffer_load_dword v11, v19, {SWS}, {sT4} offen offset:260 sc1")
        if with_mu:
            t(f"s_lshl_b32 {sT4}, {sG}, 2")
            t(f"s_add_u32 {sT4}, {sT4}, {sW}")
            t(f"s_lshl_b32 {sT4}, {sT4}, 9")
            t(f"s_add_u32 {sT4}, {sT4}, {STATS}")
            t(f"buffer_load_dword v126, v19, {SWS}, {sT4} offen sc1")
            t(f"buffer_load_dword v127, v19, {SWS}, {sT4} offen offset:256 sc1")
        return s, t

    def p3(self):
        p = self.p
        x = p["x"]
        ACC = (128, 192)
        WF, CS = 32, 116
        SEL = vr(120, 4)
        ng = p["gu_early"]
        s = Seq()
        s(f"s_lshl_b32 {sT0}, {sG}, 2")
        s(f"s_add_u32 {sT0}, {sT0}, {sW}")
        s(f"s_lshl_b32 {sHA}, {sT0}, 16")
        s(f"s_add_u32 {sHA}, {sHA}, {HBUF}")
        s(f"s_lshl_b32 {sHB}, {sT0}, 9")
        s(f"s_add_u32 {sHB}, {sHB}, {HFL}")
        s.ext(self.poll_issue(22, "v19", sHB))
        s.ext(self.poll_check(22, "v19", sHB))
        steps = [(k, (0,)) for k in range(x)] + [(k, (0, 1)) for k in range(x, 32)] + [(k, (1,)) for k in range(x)]
        hl = [(k, q) for k, qs in steps for q in qs]

        def h_load(i):
            k, q = hl[i]
            a = Seq()
            a(f"s_add_u32 {sT2}, {sHA}, {q*32768 + k*1024}")
            a(f"buffer_load_dwordx4 {vr(self.ring(i),4)}, {vL16}, {SWS}, {sT2} offen sc1")
            return a.l
        PF = min(self.NR - 2, x)
        for i in range(PF):
            s.ext(h_load(i))
        s(f"s_add_u32 {sT4}, {sFL}, {HFL-OFL+256}")
        s.ext(self.publish("hst1", sT4, 124))
        s(f"s_lshl_b32 {sT0}, {sG}, 2")
        s(f"s_add_u32 {sT0}, {sT0}, {sW}")
        s(f"s_mul_i32 {sST}, {sT0}, {2*112*1024}")
        s(f"s_lshl_b32 {sT1}, {sR}, 12")
        s(f"s_add_u32 {sST}, {sST}, {sT1}")
        s(f"s_add_u32 {sST}, {sST}, {ACT}")
        s(f"s_lshl_b32 {sFL}, {sT0}, 9")
        s(f"s_lshl_b32 {sT1}, {sR}, 3")
        s(f"s_add_u32 {sFL}, {sFL}, {sT1}")
        s(f"s_add_u32 {sFL}, {sFL}, {AFL}")
        s.ext(self.p4_setup())
        hi_state = [True]

        def rd_w(pos):
            k = steps[pos][0]
            c = k >> 2
            slot = ((c + 4) & 7) * 16384
            q = []
            hi = slot >= 0x10000
            if hi != hi_state[0]:
                a = Seq()
                for i in range(4):
                    a(f"v_xor_b32 v{12+i}, 0x10000, v{12+i}")
                q.append(a.l)
                hi_state[0] = hi
            o = (slot & 0xFFFF) + (k & 3) * 4096
            for sg in range(4):
                d = WF + 16 * (pos & 1) + 4 * sg
                a = Seq()
                a(f"ds_read_b64_tr_b16 {vr(d,2)}, v{12+sg} offset:{o}")
                a(f"ds_read_b64_tr_b16 {vr(d+2,2)}, v{12+sg} offset:{o+512}")
                q.append(a.l)
            return q

        def epilogue(q):
            e = Seq()
            A = ACC[q]
            e.ext(self.split_first(f"v{126+q}", 20, 4))
            e("v_mov_b32 v22, 0")
            e("v_mov_b32 v23, 0")
            e("v_mov_b32 v122, 0")
            e("v_mov_b32 v123, 0")
            for sg in range(4):
                e.ext(self.split_second(f"v{116+sg}", 120, 4))
                e(mf32(A + 16 * sg, vr(120, 4), vr(20, 4)))
            for ft in range(2):
                g, u = A + 32 * ft, A + 32 * ft + 16
                for i in range(8):
                    e(f"v_mul_f32 {vr(g+2*i)}, {vr(g+2*i)}, {vr(u+2*i)}")
                    e(f"v_mul_f32 {vr(g+2*i+1)}, {vr(g+2*i+1)}, {vr(u+2*i+1)}")
                    e(f"v_cvt_pk_bf16_f32 {vr(g+i)}, {vr(g+2*i)}, {vr(g+2*i+1)}")
                e(f"s_lshr_b32 {sT1}, {sW}, 1")
                e(f"s_xor_b32 {sT1}, {sT1}, {ft}")
                e(f"s_lshl_b32 {sT1}, {sT1}, 11")
                e(f"s_add_u32 {sT1}, {sT1}, {sST}")
                if q:
                    e(f"s_add_u32 {sT1}, {sT1}, {112*1024}")
                e(f"buffer_store_dwordx4 {vr(g,4)}, {vL16}, {SWS}, {sT1} offen {p['st_act']}", tok=f"ast{q}")
                e(f"buffer_store_dwordx4 {vr(g+4,4)}, {vL16}, {SWS}, {sT1} offen offset:1024 {p['st_act']}", tok=f"ast{q}")
            return e

        nxt_gu = ng
        s("s_barrier", need=("st20",) if ng else ())
        while nxt_gu < min(3, 8):
            s.ext([i for g in self.stage_dma(20 + nxt_gu) for i in g])
            nxt_gu += 1
        if not ng:
            s("s_barrier", need="st20")
        for g in rd_w(0):
            s.ext(g)
        s.ext(self.stamp("p3s"))
        st_issue, st_check = self.stats_load(True)
        hi_ = 0
        nh = PF
        started = [False, False]
        self.wd_reset()
        firstB = x + 1
        LB = p["lead_hb"]
        self.epB = epilogue(1)
        for pos, (k, qs) in enumerate(steps):
            m = Seq()
            for q in qs:
                hf = vr(self.ring(hi_), 4)
                for sg in range(4):
                    m(mf32(ACC[q] + 16 * sg, vr(WF + 16 * (pos & 1) + 4 * sg, 4), hf, None if started[q] else "0"))
                started[q] = True
                hi_ += 1
            if pos < 32:
                m(mf16(CS, SEL, vr(WF + 16 * (pos & 1), 4), None if pos else "0"))
            fill = []
            if pos + 1 < len(steps):
                kn = steps[pos + 1][0]
                if pos + 1 < 32 and kn % 4 == 0:
                    fill.append(Seq()("s_barrier", need=f"st{20 + (kn >> 2)}").l)
                    if nxt_gu < 8:
                        fill += self.stage_dma(20 + nxt_gu)
                        nxt_gu += 1
                fill += rd_w(pos + 1)
            if pos == x - LB - 2:
                t = Seq()
                t(f"s_add_u32 {sHB}, {sHB}, 256")
                t.ext(self.poll_issue(22, "v19", sHB))
                fill.append(t.l)
            if pos == x - LB:
                fill.append(self.poll_check(22, "v19", sHB).l)
            lim = min(len(hl), hi_ + PF, nh + 3)
            if pos < x - LB:
                lim = min(lim, firstB)
            while nh < lim:
                fill.append(h_load(nh))
                nh += 1
            fill += self.wd_events(("p3", pos))
            if pos == 26:
                fill.append(st_issue.l)
            if pos == 29:
                fill.append(st_check.l)
            if pos == 32:
                t = Seq()
                t(f"s_lshl_b32 {sT0}, {sW}, 8")
                t(f"s_add_u32 {sT0}, {sT0}, {((x//4 + 4) & 7) * 16384}")
                t("v_lshlrev_b32 v20, 2, v0")
                t(f"v_add_u32 v20, {sT0}, v20")
                t(f"ds_write_b32 v20, v{CS}", tok="csw")
                fill.append(t.l)
            if pos == 33:
                t = Seq()
                t("s_barrier", need="csw")
                for sg in (1, 2, 3):
                    t(f"v_xor_b32 v21, {256*sg}, v20")
                    t(f"ds_read_b32 v{CS+sg}, v21")
                fill.append(t.l)
            if pos == 34:
                self.epA = groups(epilogue(0), 2)
            if 34 <= pos < 34 + p["epa_steps"]:
                n = -(-len(self.epA) // (34 + p["epa_steps"] - pos))
                fill += self.epA[:n]
                self.epA = self.epA[n:]
            if pos == 34 + p["epa_steps"] + 1:
                fill.append(self.publish("ast0", sFL, 124).l)
            s.ext(weave(m, fill))
            if pos == x - 1:
                s.ext(self.stamp("p3a"))
            if pos == 31:
                s.ext(self.stamp("p3b"))
        s.ext(self.stamp("p3c"))
        return s

    def spare(self):
        s = Seq()
        F = 128
        s(f"s_add_u32 {sT4}, {sFL}, {HFL-OFL+256}")
        s.ext(self.publish("hst1", sT4, 124))
        s.ext(self.p4_setup())
        s(f"s_lshl_b32 {sT0}, {sG}, 2")
        s(f"s_add_u32 {sT0}, {sT0}, {sR}")
        s(f"s_sub_u32 {sT0}, {sT0}, 28")
        s(f"s_lshl_b32 {sT0}, {sT0}, 1")
        s(f"s_and_b32 {sT1}, {sW}, 1")
        s(f"s_add_u32 {sT0}, {sT0}, {sT1}")
        s(f"s_lshl_b32 {sHB}, {sT0}, 8")
        s(f"s_add_u32 {sST}, {sHB}, {STATS}")
        s(f"s_add_u32 {sHB}, {sHB}, {HFL}")
        s(f"s_lshl_b32 {sHA}, {sT0}, 15")
        s(f"s_lshr_b32 {sT1}, {sW}, 1")
        s(f"s_lshl_b32 {sT1}, {sT1}, 14")
        s(f"s_add_u32 {sHA}, {sHA}, {sT1}")
        s(f"s_add_u32 {sHA}, {sHA}, {HBUF}")
        s(f"s_and_b32 {sT0}, {sT0}, 7")
        s(f"s_lshl_b32 {sT0}, {sT0}, 3")
        s(f"s_lshl_b32 {sFL}, {sG}, 7")
        s(f"s_add_u32 {sFL}, {sFL}, {sT0}")
        s(f"s_add_u32 {sFL}, {sFL}, {SFL}")
        s.ext(self.poll_issue(22, "v19", sHB))
        s.ext(self.poll_check(22, "v19", sHB))
        for i in range(16):
            if i % 4 == 0:
                s(f"s_add_u32 {sT2}, {sHA}, {i*1024}")
            s(f"buffer_load_dwordx4 {vr(F+4*i,4)}, {vL16}, {SWS}, {sT2} offen offset:{1024*(i%4)} sc1")
        s("v_mov_b32 v112, 0")
        s("v_mov_b32 v113, 0")
        for i in range(16):
            s(mf16(116, vr(120, 4), vr(F + 4 * i, 4), None if i else "0"))
        for i in range(64):
            s(f"v_dot2c_f32_bf16 v{112 + (i & 1)}, {vr(F+i)}, {vr(F+i)}")
        s("v_add_f32 v112, v112, v113")
        s("v_mov_b32 v113, v112")
        s("v_permlane32_swap_b32 v112, v113")
        s("v_add_f32 v117, v112, v113")
        s(f"s_lshl_b32 {sT0}, {sW}, 9")
        s("v_lshlrev_b32 v20, 3, v0")
        s(f"v_add_u32 v20, {sT0}, v20")
        s("s_waitcnt vmcnt(0)")
        s("s_barrier")
        s("ds_write_b64 v20, v[116:117]", tok="spw")
        s("s_barrier", need="spw")
        s("v_xor_b32 v20, 1024, v20")
        s("ds_read_b64 v[112:113], v20")
        s("v_add_f32 v116, v116, v112")
        s("v_add_f32 v117, v117, v113")
        s(f"v_mul_f32 v116, {1.0/512!r}, v116")
        s(f"v_mul_f32 v117, {1.0/512!r}, v117")
        s("v_fma_f32 v117, -v116, v116, v117")
        s("v_max_f32 v117, 0, v117")
        s("v_add_f32 v117, 0x3727c5ac, v117")
        s("v_rcp_f32 v117, v117")
        s("v_mul_f32 v116, -0.5, v116")
        s(f"buffer_store_dwordx2 v[116:117], v19, {SWS}, {sST} offen {self.p['st_local']}", tok="sst")
        s.ext(self.publish("sst", sFL, 124))
        self.wd_reset()
        for c in range(9):
            if c >= 2:
                for g in self.wd_drain(c - 2):
                    s.ext(g)
            if c < 7:
                for g in self.wd_dma(c, (R3, 0x8000)[c & 1]):
                    s.ext(g)
        a, b = self.stats_load(False)
        s.ext(a)
        s.ext(b)
        s("s_waitcnt vmcnt(0) lgkmcnt(0)")
        return s

    def p4(self, with_epb):
        p = self.p
        A = 128
        s = Seq()
        s.ext(self.poll_issue(22, "v16", sAB))
        s.ext(self.poll_check(22, "v16", sAB))
        PF = self.NR - 1
        nl = 0
        for i in range(PF):
            s.ext(self.act_load(i))
        nl = PF
        if with_epb:
            for g in self.wd_events(("p4", -1)):
                s.ext(g)
            s.ext(self.epB)
        s.ext(self.stamp("p4s") if with_epb else Seq())
        red = Seq()
        red(f"s_lshl_b32 {sT0}, {sW}, 13")
        red(f"v_add_u32 v12, {sT0}, {vL16}")
        for u in (1, 2, 3):
            red(f"v_xor_b32 v{12+u}, {8192*u}, v12")
        red("v_and_b32 v20, 31, v0")
        red("v_lshlrev_b32 v20, 10, v20")
        red("v_lshrrev_b32 v21, 5, v0")
        red("v_lshl_add_u32 v20, v21, 4, v20")
        red(f"s_lshl_b32 {sHA}, {sBLK}, 16")
        red(f"s_lshl_b32 {sT0}, {sJ}, 7")
        red(f"s_add_u32 {sHA}, {sHA}, {sT0}")
        red(f"s_lshl_b32 {sT0}, {sW}, 5")
        red(f"s_add_u32 {sHA}, {sHA}, {sT0}")
        s.ext(red)

        def send(q):
            e = Seq()
            for u in (1, 2, 3):
                for hf in range(2):
                    e(f"ds_write_b128 v{12+u}, {vr(A+32*q+8*u+4*hf,4)} offset:{32768*q + 2048*u + 1024*hf}", tok=f"red{q}")
            return e

        def recv(q, T):
            e = Seq()
            e("s_barrier", need=f"red{q}")
            for u in (1, 2, 3):
                for hf in range(2):
                    e(f"ds_read_b128 {vr(T+8*(u-1)+4*hf,4)}, v12 offset:{32768*q + 2048*u + 1024*hf}")
            d, hp = A + 32 * q, vXR + 4 * q
            for i in range(8):
                e(f"v_add_f32 {vr(d+i)}, {vr(d+i)}, {vr(T+i)}")
                e(f"v_add_f32 {vr(T+8+i)}, {vr(T+8+i)}, {vr(T+16+i)}")
            for i in range(8):
                e(f"v_add_f32 {vr(d+i)}, {vr(d+i)}, {vr(T+8+i)}")
                if i & 1:
                    e(f"v_and_b32 {vr(T+i)}, 0xffff0000, {vr(hp+(i>>1))}")
                else:
                    e(f"v_lshlrev_b32 {vr(T+i)}, 16, {vr(hp+(i>>1))}")
                e(f"v_fma_f32 {vr(d+i)}, {vr(d+i)}, v{10+q}, {vr(T+i)}")
            for i in range(4):
                e(f"v_cvt_pk_bf16_f32 {vr(d+i)}, {vr(d+2*i)}, {vr(d+2*i+1)}")
            e(f"s_add_u32 {sT0}, {sHA}, {q*32768}")
            e(f"buffer_store_dwordx4 {vr(d,4)}, v20, {SOUT}, {sT0} offen {p['st_out']}")
            return e

        extra = {}
        if with_epb:
            t = Seq()
            t(f"s_add_u32 {sT4}, {sFL}, 256")
            t.ext(self.publish("ast1", sT4, 124))
            extra[3] = [t.l]
        extra.setdefault(28 + 1, []).append(Seq()("s_barrier").l)
        for i, g in enumerate(groups(send(0), 1)):
            extra.setdefault(28 + 3 + i, []).append(g)
        for i, g in enumerate(groups(recv(0, 192), 4)):
            extra.setdefault(28 + 11 + i, []).append(g)
        for i in range(56):
            q, k = divmod(i, 28)
            m = Seq()
            for ct in range(2):
                m(mf32(A + 32 * q + 16 * ct, ar(8 * k + 4 * ct, 4), vr(self.ring(64 + i), 4), None if k else "0"))
            fill = []
            LA = p["lead_ab"]
            if i == 28 - LA - 4:
                t = Seq()
                t(f"s_add_u32 {sAB}, {sAB}, 256")
                t.ext(self.poll_issue(22, "v16", sAB))
                fill.append(t.l)
            if i == 28 - LA:
                fill.append(self.poll_check(22, "v16", sAB).l)
            lim = min(56, i + 1 + PF, nl + 2)
            if i < 28 - LA:
                lim = min(lim, 28)
            while nl < lim:
                fill.append(self.act_load(nl))
                nl += 1
            if with_epb:
                fill += self.wd_events(("p4", i))
            fill += extra.get(i, [])
            s.ext(weave(m, fill))
            if i == 27 and with_epb:
                s.ext(self.stamp("p4a"))
        if with_epb:
            s.ext(self.stamp("p4b"))
        s.ext(send(1))
        s.ext(recv(1, 192))
        return s

    def finale(self):
        s = Seq()
        done = self.lab("fin")
        s(f"s_or_b32 {sT0}, {sR}, {sW}")
        s(f"s_cmp_lg_u32 {sT0}, 0")
        s(f"s_cbranch_scc1 {done}")
        skip = self.lab("fin")
        s(f"s_cmp_eq_u32 {sG}, 0")
        s(f"s_cbranch_scc1 {skip}")
        s(f"s_lshl_b32 {sT0}, {sG}, 7")
        s(f"s_add_u32 {sT0}, {sT0}, {EPOCH - 128}")
        s(f"v_mov_b32 v20, {sPTAGlo}")
        s(f"v_mov_b32 v21, {sPTAGhi}")
        s(f"buffer_store_dwordx2 v[20:21], {vZ}, {SWS}, {sT0} offen sc1")
        s(f"{skip}:")
        s(f"s_cmp_lg_u32 {sG}, 7")
        s(f"s_cbranch_scc1 {done}")
        s(f"s_mov_b32 {sT0}, {EPOCH + 7*128}")
        s(f"buffer_store_dwordx2 v[124:125], {vZ}, {SWS}, {sT0} offen sc1")
        s(f"{done}:")
        return s

    def dump_stamps(self):
        s = Seq()
        if not self.p["stamps"]:
            return s
        s("s_waitcnt vmcnt(0)")
        s.ext(self.stamp("end"))
        s("s_memrealtime s[94:95]")
        s("s_waitcnt lgkmcnt(0)")
        s("v_writelane_b32 v3, s94, 62")
        s("v_writelane_b32 v3, s98, 63")
        s("v_writelane_b32 v3, s100, 61")
        s(f"s_lshl_b32 {sT0}, s2, 2")
        s(f"s_add_u32 {sT0}, {sT0}, {sW}")
        s(f"s_lshl_b32 {sT0}, {sT0}, 8")
        s(f"s_add_u32 {sT0}, {sT0}, {STAMP}")
        s("v_lshlrev_b32 v20, 2, v0")
        s(f"buffer_store_dword v3, v20, {SWS}, {sT0} offen")
        return s

    def build(self):
        p = self.p
        p.setdefault("wd", {("p3", 22): [("dma", 0, R3)], ("p3", 28): [("drain", 0), ("dma", 1, R3)],
                            ("p3", 34): [("dma", 2, 0)], ("p3", 36): [("dma", 3, 0x8000)],
                            ("p3", 39): [("drain", 1), ("dma", 4, R3)], ("p3", 42): [("drain", 2), ("dma", 5, 0)],
                            ("p4", -1): [("drain", 3), ("dma", 6, 0x8000)],
                            ("p4", 8): [("drain", 4)], ("p4", 13): [("drain", 5)], ("p4", 18): [("drain", 6)]})
        p.setdefault("lead_hb", 5)
        p.setdefault("lead_ab", 8)
        p.setdefault("epa_steps", 5)
        head = Seq()
        if p["stamps"]:
            head("s_memrealtime s[98:99]")
            head("s_memtime s[100:101]")
        head.ext(self.prologue())
        head.ext(self.p1())
        head.ext(self.attention())
        head.ext(self.wo_phase())
        head(f"s_cmp_ge_u32 {sR}, 28")
        head("s_cbranch_scc1 L_spare")
        o1, st = finalize(head.l)
        st_sp = st.copy()
        main = Seq().ext(self.p3())
        main.ext(self.p4(True))
        main.ext(self.finale())
        main("L_fin:")
        main.ext(self.dump_stamps())
        main("L_end:")
        main("s_endpgm")
        o2, _ = finalize(main.l, st)
        sp = Seq()("L_spare:")
        sp.ext(self.spare())
        sp.ext(self.p4(False))
        sp("s_branch L_fin")
        o3, _ = finalize(sp.l, st_sp)
        text = render(o1) + render(o2) + render(o3) + "L_hot_end:\n"
        for t in self.tail:
            o, _ = finalize(t.l)
            text += render(o)
        text += "L_abort:\n    s_endpgm\n"
        hdr = open(f"cdna_kernels/{NAME}.s.ref").read().split("; Override launch")[0]
        out = hdr + "; @launch grid=(256,1,1) block=(256,1,1) lds=163840\n"
        out += '.amdgcn_target "amdgcn-amd-amdhsa--gfx950"\n.text\n'
        out += f".globl {NAME}_kernel\n.p2align 8\n.type {NAME}_kernel,@function\n{NAME}_kernel:\n"
        out += text.replace("CODE_BYTES", f"L_hot_end-{NAME}_kernel")
        out += f""".section .rodata,"a"
.p2align 6
.amdhsa_kernel {NAME}_kernel
  .amdhsa_next_free_vgpr 512
  .amdhsa_next_free_sgpr 102
  .amdhsa_accum_offset 256
  .amdhsa_group_segment_fixed_size 0
  .amdhsa_kernarg_size 80
  .amdhsa_user_sgpr_count 2
  .amdhsa_user_sgpr_kernarg_segment_ptr 1
  .amdhsa_system_sgpr_workgroup_id_x 1
.end_amdhsa_kernel
"""
        return out


if __name__ == "__main__":
    import ast
    kw = {}
    outp = f"cdna_kernels/{NAME}.s"
    for a in sys.argv[1:]:
        k, v = a.split("=", 1)
        if k == "out":
            outp = v
            continue
        try:
            kw[k] = ast.literal_eval(v)
        except Exception:
            kw[k] = v
    g = Gen(**kw)
    txt = g.build()
    if g.p["stamps"]:
        txt = txt.replace("; @launch", "; stamps: " + ",".join(g.stamp_names) + "\n; @launch", 1)
    open(outp, "w").write(txt)
    print("wrote", outp, len(txt), "bytes")
```

```python
import re

TRANS = ("v_exp_f32", "v_log_f32", "v_rcp_f32", "v_rsq_f32", "v_sqrt_f32")
REG_RE = re.compile(r"^(-?)(?:abs\()?([vas])(?:(\d+)|\[(\d+):(\d+)\])\)?$")


def regs_of(op):
    op = op.strip()
    if op in ("vcc", "exec", "m0", "scc"):
        return {op}
    if op in ("vcc_lo", "vcc_hi"):
        return {"vcc"}
    if op in ("exec_lo", "exec_hi"):
        return {"exec"}
    m = REG_RE.match(op)
    if not m:
        return set()
    t = m.group(2)
    if m.group(3) is not None:
        return {(t, int(m.group(3)))}
    return {(t, i) for i in range(int(m.group(4)), int(m.group(5)) + 1)}


class Ins:
    __slots__ = ("text", "mn", "kind", "defs", "uses", "tok", "need", "srcc", "srcab", "passes", "stdata", "raw")

    def __init__(self, text, tok=None, need=(), raw=False):
        self.text = text.strip()
        self.tok = tok
        self.need = tuple(need) if not isinstance(need, str) else (need,)
        self.raw = raw
        self.defs, self.uses = set(), set()
        self.srcc, self.srcab, self.stdata = set(), set(), set()
        self.passes = 0
        t = self.text.split(";")[0].strip()
        if t.endswith(":") or t.startswith(".") or not t:
            self.mn, self.kind = t, "label"
            return
        parts = t.split(None, 1)
        mn = parts[0]
        self.mn = mn
        rest = parts[1] if len(parts) > 1 else ""
        ops = [o.strip() for o in rest.split(",")] if rest else []
        mods = []
        if ops:
            last = ops[-1].split()
            ops[-1] = last[0] if last else ""
            mods = last[1:]
        R = [regs_of(o) for o in ops]
        base = re.sub(r"_(e32|e64)$", "", mn)
        allr = set().union(*R) if R else set()
        rest_r = set().union(*R[1:]) if len(R) > 1 else set()
        if base.startswith("v_mfma"):
            self.kind = "mfma"
            self.passes = 8 if "32x32" in base else 4
            self.defs, self.srcab, self.srcc = R[0], R[1] | R[2], R[3]
            self.uses = self.srcab | self.srcc
        elif base.startswith("v_"):
            self.kind = "trans" if base in TRANS else ("dot" if base.startswith("v_dot") else "valu")
            self.uses = set(rest_r) | {"exec"}
            self.defs = set(R[0])
            if base.startswith("v_permlane"):
                self.defs = R[0] | R[1]
                self.uses = R[0] | R[1] | {"exec"}
            elif base.startswith(("v_fmac", "v_dot2c")):
                self.uses |= R[0]
            elif base.startswith(("v_add_co", "v_sub_co", "v_addc_co")):
                self.defs = R[0] | R[1]
                self.uses = set().union(*R[2:]) | {"exec"}
            elif base == "v_nop":
                pass
        elif base.startswith(("buffer_load", "global_load")):
            if "lds" in mods:
                self.kind = "dma"
                self.uses = allr | {"m0", "exec"}
            else:
                self.kind = "vld"
                self.defs, self.uses = R[0], rest_r | {"exec"}
        elif base.startswith(("buffer_store", "global_store")):
            self.kind = "vst"
            self.uses = allr | {"exec"}
            self.stdata = R[0] if base.startswith("buffer") else R[1]
            if not base.endswith(("x3", "x4")):
                self.stdata = set()
        elif base.startswith(("buffer_wbl2", "buffer_inv")):
            self.kind = "vst"
        elif base.startswith("ds_read"):
            self.kind = "dsr"
            self.defs, self.uses = R[0], rest_r | {"exec"}
        elif base.startswith("ds_"):
            self.kind = "dsw"
            self.uses = allr | {"exec"}
        elif base.startswith(("s_load", "s_memtime", "s_memrealtime")):
            self.kind = "smem"
            self.defs, self.uses = R[0], rest_r
        elif base == "s_waitcnt":
            self.kind = "wait"
        elif base == "s_nop":
            self.kind = "nop"
        elif base == "s_barrier":
            self.kind = "barrier"
        elif base.startswith(("s_cbranch", "s_branch", "s_endpgm", "s_setpc")):
            self.kind = "branch"
            if "vcc" in base:
                self.uses = {"vcc"}
            elif "scc" in base:
                self.uses = {"scc"}
        elif base.startswith("s_cmp") or base.startswith("s_bitcmp"):
            self.kind = "salu"
            self.defs, self.uses = {"scc"}, allr
        elif base.startswith("s_"):
            self.kind = "salu"
            if base in ("s_sleep", "s_setprio"):
                return
            self.defs, self.uses = set(R[0]), set(rest_r)
            if not base.startswith(("s_mov", "s_getreg", "s_getpc", "s_mul_i32", "s_cselect")):
                self.defs |= {"scc"}
            if base.startswith(("s_cselect", "s_addc", "s_subb")):
                self.uses |= {"scc"}
            if "saveexec" in base:
                self.defs |= {"exec"}
                self.uses |= {"exec"}
            if base.startswith(("s_addk", "s_mulk")):
                self.uses |= R[0]
        else:
            raise ValueError("unknown instruction: " + text)

    def states(self):
        if self.kind == "label":
            return 0
        if self.kind == "nop":
            return int(self.text.split()[1], 0) + 1
        return 1


def cost(i):
    if i.kind == "label":
        return 0
    if i.kind in ("dsr", "dsw", "trans", "mfma"):
        return 8
    if i.kind == "nop":
        return 4 * i.states()
    return 4


MEM_KINDS = ("dsr", "dsw", "vld", "vst", "dma")
VEC_KINDS = MEM_KINDS + ("valu", "trans", "dot", "mfma")


class Clock:
    def __init__(self):
        self.t = 0
        self.vec = 0
        self.alu = 0
        self.ds = 0
        self.mf = 0
        self.last = None

    def copy(self):
        c = Clock()
        c.__dict__.update(self.__dict__)
        return c

    def ready(self, i):
        k = i.kind
        t = self.t
        if k in VEC_KINDS:
            t = max(t, self.vec)
            if k in ("dsr", "dsw"):
                t = max(t, self.ds)
            if k in ("valu", "trans", "dot", "mfma"):
                t = max(t, self.alu)
            if k in ("mfma", "dot"):
                t = max(t, self.mf + (16 if (k == "dot") != (self.last == "dot") and k == "dot" else 0))
        return t

    def issue(self, i):
        k = i.kind
        if k == "label":
            return self.t
        t = self.ready(i)
        self.t = t + (8 if k == "trans" else 4 * i.states())
        if k == "mfma":
            self.mf = t + 4 * i.passes
            self.alu = t + 8
        elif k in MEM_KINDS:
            if self.last not in MEM_KINDS:
                self.vec = t + (16 if (k in ("vld", "vst", "dma") and self.last != "mfma") else 12)
            if k in ("dsr", "dsw"):
                self.ds = t + (8 if k == "dsr" and "b128" not in i.mn else 16 if k == "dsr" else 52 if "b128" in i.mn else 24)
        if k in VEC_KINDS:
            self.last = k
        return t


def depends(a, b):
    if a.defs & (b.uses | b.defs) or a.uses & b.defs:
        return True
    ka, kb = a.kind, b.kind
    ds, vm = ("dsr", "dsw"), ("vld", "vst", "dma")
    if (ka in ds and kb in ds) or (ka in vm and kb in vm):
        return True
    if a.tok is not None and a.tok in b.need:
        return True
    if a.need and kb in MEM_KINDS:
        return True
    return False


def reorder(lst, clk):
    n = len(lst)
    pred = [[j for j in range(i) if depends(lst[j], lst[i])] for i in range(n)]
    feeds = [False] * n
    for i in reversed(range(n)):
        if lst[i].kind in MEM_KINDS or feeds[i]:
            for j in pred[i]:
                feeds[j] = True
    done, out = set(), []
    while len(out) < n:
        best = None
        for i in range(n):
            if i in done or any(j not in done for j in pred[i]):
                continue
            k = lst[i].kind
            t = clk.ready(lst[i])
            pr = 0 if k in MEM_KINDS else 1 if feeds[i] else 2 if k in VEC_KINDS else 3
            key = (t, pr, i)
            if best is None or key < best[0]:
                best = (key, i)
        i = best[1]
        done.add(i)
        out.append(lst[i])
        clk.issue(lst[i])
    return out


FENCE = ("label", "branch", "barrier", "wait", "mfma", "smem", "nop")


def sched_gap(lst, clk):
    out, run = [], []
    for x in lst:
        if x.kind in FENCE or "exec" in x.defs:
            out += reorder(run, clk)
            run = []
            out.append(x)
            clk.issue(x)
        else:
            run.append(x)
    out += reorder(run, clk)
    return out


def isv(r):
    return isinstance(r, tuple) and r[0] in "va"


def iss(r):
    return (isinstance(r, tuple) and r[0] == "s") or r == "vcc"


VALU_KINDS = ("valu", "trans", "dot")
VM_KINDS = ("vld", "vst", "dma")


def hazard_need(p, c):
    n = 0
    pv = {r for r in p.defs if isv(r)}
    if p.kind in VALU_KINDS:
        if c.kind == "mfma" and pv & c.uses:
            n = max(n, 3 if p.kind == "dot" else 2)
        if c.kind in VALU_KINDS:
            if c.mn.startswith("v_permlane") and pv & c.uses:
                n = max(n, 2)
            if c.mn.startswith(("v_readlane", "v_readfirstlane")) and pv & c.uses:
                n = max(n, 1)
            if p.kind == "trans" and c.kind != "trans" and pv & c.uses:
                n = max(n, 1)
            if "dpp" in c.text or "row_" in c.text:
                if pv & c.uses:
                    n = max(n, 2)
        if p.kind == "dot" and pv & (c.uses | c.defs) and not (c.mn == p.mn and not (pv & (c.uses - c.defs))):
            n = max(n, 3)
        ps = {r for r in p.defs if iss(r)}
        if ps & c.uses:
            if c.kind in VM_KINDS:
                n = max(n, 5)
            elif c.kind in VALU_KINDS:
                n = max(n, 4 if c.mn.startswith(("v_readlane", "v_writelane")) else 2)
            else:
                n = max(n, 1)
    if p.kind == "mfma":
        big = p.passes == 8
        if c.kind == "mfma":
            if p.defs & c.srcab:
                n = max(n, 12 if big else 8)
            if p.defs & c.srcc and not (p.defs == c.srcc and p.passes == c.passes):
                n = max(n, 10 if big else 6)
            if p.defs & c.defs and not (p.defs == c.defs and p.passes == c.passes):
                n = max(n, 10 if big else 6)
        elif p.defs & (c.uses | c.defs):
            n = max(n, 12 if big else 8)
        if c.kind in VALU_KINDS and (p.srcc & c.defs):
            n = max(n, 7 if big else 3)
    if p.kind == "salu" and "m0" in p.defs and c.kind == "dma":
        n = max(n, 1)
    if p.kind == "salu" and "exec" in p.defs and c.kind == "mfma":
        n = max(n, 1)
    if p.kind == "vst" and p.stdata & c.defs:
        n = max(n, 2)
    return n


class State:
    def __init__(self):
        self.vm = []
        self.lg = []
        self.hist = []
        self.done = set()
        self.clk = Clock()
        self.m0 = None
        self.marks = []

    def copy(self):
        s = State()
        s.vm, s.lg, s.hist, s.done = list(self.vm), list(self.lg), list(self.hist), set(self.done)
        s.clk, s.m0 = self.clk.copy(), self.m0
        return s


MERGE_AGE = 110
HOIST_AGE = 80


def finalize(instrs, st=None):
    st = st or State()
    out = []

    def push(i):
        out.append(i)
        st.clk.issue(i)
        if i.kind != "label":
            st.hist.append(i)
            if len(st.hist) > 24:
                st.hist.pop(0)

    def retire_vm(keep):
        while len(st.vm) > keep:
            st.done.add(st.vm.pop(0)[1])

    def retire_lg(keep):
        while len(st.lg) > keep:
            st.done.add(st.lg.pop(0)[1])

    def waits(c, hoist=False):
        touch = c.uses | c.defs
        vi = -1
        for i, e in enumerate(st.vm):
            if e[0] & touch or (e[1] is not None and e[1] in c.need):
                vi = i
        li = -1
        for i, e in enumerate(st.lg):
            if e[0] & touch or (e[1] is not None and e[1] in c.need):
                if c.kind == "dsr" and not e[2] and not (e[0] & c.uses) and not (e[1] is not None and e[1] in c.need):
                    continue
                li = i
        now = st.clk.t if hoist else st.clk.ready(c)
        if hoist and li >= 0 and (now - st.lg[li][3] < HOIST_AGE or any(e[2] for e in st.lg)):
            return
        w = []
        if vi >= 0:
            n = min(len(st.vm) - vi - 1, 63)
            w.append(f"vmcnt({n})")
            retire_vm(n)
        if li >= 0:
            while li + 1 < len(st.lg) and now - st.lg[li + 1][3] >= MERGE_AGE:
                li += 1
            n = len(st.lg) - li - 1
            if any(e[2] for e in st.lg):
                n = 0
            n = min(n, 15)
            w.append(f"lgkmcnt({n})")
            retire_lg(n)
        if w:
            push(Ins("s_waitcnt " + " ".join(w)))

    for idx, c in enumerate(instrs):
        if c.kind == "label":
            if c.text.startswith(";mark"):
                st.marks.append((c.text.split()[1], st.clk.t))
                continue
            push(c)
            continue
        if c.kind == "wait":
            m = re.search(r"vmcnt\((\d+)\)", c.text)
            if m:
                retire_vm(int(m.group(1)))
            m = re.search(r"lgkmcnt\((\d+)\)", c.text)
            if m:
                n = int(m.group(1))
                if n == 0 or not any(e[2] for e in st.lg):
                    retire_lg(n)
            push(c)
            continue
        for t in c.need:
            known = t in st.done or any(e[1] == t for e in st.vm) or any(e[1] == t for e in st.lg)
            assert known, f"token {t} never produced before: {c.text}"
        waits(c)
        if "m0" in c.defs:
            if st.m0 is not None and st.m0.text == c.text:
                continue
            st.m0 = c
        elif st.m0 is not None and c.defs & st.m0.uses:
            st.m0 = None
        need, dist = 0, 0
        for p in reversed(st.hist):
            need = max(need, hazard_need(p, c) - dist)
            dist += p.states()
            if dist >= 20:
                break
        while need > 0:
            k = min(need, 16)
            push(Ins(f"s_nop {k-1}"))
            need -= k
        push(c)
        if c.kind in VM_KINDS:
            st.vm.append((set(c.defs), c.tok))
            assert len(st.vm) <= 63, "too many outstanding vector memory ops: " + c.text
        elif c.kind in ("dsr", "dsw"):
            st.lg.append((set(c.defs), c.tok, False, st.clk.t))
        elif c.kind == "smem":
            st.lg.append((set(c.defs), c.tok, True, st.clk.t))
        if c.kind in MEM_KINDS and st.clk.vec > st.clk.t:
            free = (st.clk.vec - st.clk.t) // 4
            for x in instrs[idx + 1: idx + 12]:
                if x.kind in ("label", "branch", "barrier", "wait"):
                    break
                if x.kind == "mfma":
                    if free > 0:
                        waits(x, hoist=True)
                    break
                if x.kind == "salu" and free > -9:
                    free -= 1
    return out, st


class Seq:
    def __init__(self):
        self.l = []

    def __call__(self, text, tok=None, need=()):
        for ln in text.strip().split("\n"):
            ln = ln.strip()
            if ln:
                self.l.append(Ins(ln, tok=tok, need=need))
        return self

    def ext(self, other):
        self.l.extend(other.l if isinstance(other, Seq) else other)
        return self

    def __len__(self):
        return len(self.l)


def weave(main, fillers, paced=(), start=0, end=None):
    main = main.l if isinstance(main, Seq) else main
    pos = [i for i, x in enumerate(main) if x.kind == "mfma"]
    fillers = [g for g in fillers if g]
    paced = [g for g in paced if g]
    s = Seq()
    if not pos:
        s.l = list(main) + flat(merge(fillers, paced))
        return s
    own = []
    for a, i in enumerate(pos):
        nxt = pos[a + 1] if a + 1 < len(pos) else len(main)
        own.append(main[i + 1:nxt])
    sel = list(range(len(pos)))[start:end]
    tcum, t = [], 0
    for a in sel:
        tcum.append(t)
        t += 4 * main[pos[a]].passes
    pc = {a: [] for a in sel}
    for k, g in enumerate(paced):
        want = t * (k + 0.3) / len(paced)
        big = [b for b in range(len(sel)) if main[pos[sel[b]]].passes == 8] or list(range(len(sel)))
        b = min(big, key=lambda b: abs(tcum[b] - want))
        pc[sel[b]] += g
    probe = Ins("v_mfma_f32_16x16x32_bf16 v[0:3], v[0:3], v[0:3], v[0:3]")

    def length(a, lst):
        clk = Clock()
        clk.issue(main[pos[a]])
        clk.mf = 0
        extra = sum(4 * x.passes - 8 for x in lst if x.kind == "mfma")
        sched_gap([x for x in lst if x.kind != "dot"], clk)
        clk.mf = 0
        return clk.ready(probe) + max(0, extra - 24)

    def place(slack):
        k, res = 0, {}
        for a in sel:
            cur = []
            lim = 4 * main[pos[a]].passes + slack
            while k < len(fillers) and length(a, cur + fillers[k] + pc[a] + own[a]) <= lim:
                cur = cur + fillers[k]
                k += 1
            if not cur and k < len(fillers) and length(a, fillers[k]) > lim and main[pos[a]].passes == 8 and not pc[a]:
                cur = list(fillers[k])
                k += 1
            res[a] = cur
        return res if k == len(fillers) else None
    slack = 0
    while True:
        res = place(slack)
        if res is not None:
            break
        slack += 4
    out = list(main[:pos[0]])
    for a, i in enumerate(pos):
        out.append(main[i])
        clk = Clock()
        clk.issue(main[i])
        body = res.get(a, []) + pc.get(a, [])
        out += sched_gap(body + [x for x in own[a] if x.kind != "dot"], clk)
        out += [x for x in own[a] if x.kind == "dot"]
    s.l = out
    return s


def merge(a, b):
    ca = [sum(cost(x) for x in g) for g in a]
    ta = sum(ca)
    out, cum, k = [], 0, 0
    for g, c in zip(a, ca):
        while k < len(b) and cum >= ta * (k + 0.5) / len(b):
            out.append(b[k])
            k += 1
        out.append(g)
        cum += c
    out += b[k:]
    return out


def flat(gs):
    return [i for g in gs for i in g]


def groups(seq, n=1):
    l = seq.l if isinstance(seq, Seq) else seq
    return [l[i:i + n] for i in range(0, len(l), n)]


def render(instrs):
    return "\n".join((i.text if i.kind == "label" else "    " + i.text) for i in instrs) + "\n"
```

```python
import sys
from asmlib import *

NAME = "sequential_preLN__sliding_block__glu_gated_bilinear__prompt"

KBUF, VBUF, OBUF, HBUF, ACT = 0x0, 0x200000, 0x400000, 0x600000, 0x800000
LFL = 0xF00000
F_O, F_H, F_A, F_S = 0, 512, 1024, 1536
SFL = 0xF10000
EPOCH = 0xF11000
KFL = 0xF20000
STAMP = 0xF80000
WS_BYTES = 0x1000000
R3 = 0x20000
BIGOFF = 0x40000000

DEFAULTS = dict(
    stamps=False,
    force_safe=False,
    force_slow=False,
    dist=3, d0=2,
    t3=True, sp_first=2,
    tq=-1,
    pre1=330,
    x=16,
    x_pol="nt",
    pt_pol="sc1",
    ld_local="sc1",
    st_local="sc1",
    st_act="sc1",
    st_out="",
    u_flk=15, u_flv=23, u_pk=19, u_ck=22,
    a_pv=3, a_cv=7, lag=4,
    a_pub=27, a_po=30, a_co=33,
    w_pub=0, w_poll=6, w_chk=24,
    lead_hb=6, epa_steps=5, a_flag=43, a_poll=46,
    epb_chk=40, b_pub=8, lead_ab=8,
)

SX, SWQ, SWO, SWG, SWU, SWD, SOUT, SWS = ("s[8:11]", "s[12:15]", "s[16:19]", "s[20:23]", "s[24:27]",
                                          "s[28:31]", "s[32:35]", "s[36:39]")
sG, sB, sJ, sW, sBLK, sR = "s40", "s41", "s42", "s43", "s44", "s45"
sTAG, sTAGlo, sTAGhi = "s[46:47]", "s46", "s47"
sPTAGlo, sPTAGhi = "s48", "s49"
sXCC, sLOCAL, sBUD = "s50", "s51", "s52"
sM0W = "s53"
sT0, sT1, sT2, sT3, sT4 = "s54", "s55", "s56", "s57", "s58"
sRS = "s59"
sKV = ["s60", "s61", "s62", "s63"]
sCW, sCX, sPAN = "s64", "s65", "s66"
sWS_ = "s67"
sVMASK = "s[68:69]"
sKST, sKFL = "s70", "s71"
sOST, sOF = "s72", "s73"
sGU, sWDN = "s74", "s75"
sAA, sLB, sLW, sOD = "s76", "s77", "s78", "s79"
sONE = ["s80", "s81", "s82", "s83"]
sM0D, sEXW = "s84", "s85"
sEX = "s[86:87]"
sC3, sC4 = "s88", "s89"
sH = ["s90", "s91"]
sGS = "s41"
sHS, sAST, sAF, sOUTO, sTW = "s3", "s4", "s5", "s6", "s7"
SLOT = [n % 6 for n in range(20)] + [6, 7, 2, 3, 4, 5, 0, 1]
OB_SLOT = 0
AK_, AV_, AWO = 64, 104, 128
WD_HOME = [0, 192, 208, 224, 240, 48, 16, 32, 64, 80, 96, 112, 128, 144]

vL16 = "v1"
vZ = "v2"
vXR = 24


def vr(a, n=1):
    return f"v{a}" if n == 1 else f"v[{a}:{a+n-1}]"


def ar(a, n=1):
    return f"a{a}" if n == 1 else f"a[{a}:{a+n-1}]"


def mf32(d, a, b, c=None):
    return f"v_mfma_f32_32x32x16_bf16 {vr(d,16)}, {a}, {b}, {vr(d,16) if c is None else c}"


def mf16(d, a, b, c=None):
    return f"v_mfma_f32_16x16x32_bf16 {vr(d,4)}, {a}, {b}, {vr(d,4) if c is None else c}"


def off(n):
    return f" offset:{n}" if n else ""


class Gen:
    def __init__(self, **kw):
        self.p = dict(DEFAULTS)
        self.p.update(kw)
        self.tail = []
        self.nlab = 0
        self.stamp_names = []
        self.stashed = {}

    def lab(self, s):
        self.nlab += 1
        return f"L_{s}_{self.nlab}"

    def stamp(self, name):
        s = Seq()
        if not self.p["stamps"] or (self.p["stamps"] is not True and name not in self.p["stamps"]):
            return s
        i = len(self.stamp_names)
        self.stamp_names.append(name)
        s("s_memtime s[94:95]")
        s("s_memrealtime s[92:93]")
        s("s_waitcnt lgkmcnt(0)")
        s(f"v_writelane_b32 v3, s94, {i}")
        s(f"v_writelane_b32 v3, s92, {i+30}")
        return s

    def lazy(self, s, k):
        if self.p["stamps"] and self.p.get("lazy") == k:
            s(";mark lazy")
            s("s_nop 4")
            s("s_memtime s[96:97]")
            self.lazy_i = len(self.stamp_names)
            self.stamp_names.append("lazy")

    def poll_issue(self, dst, voff, soff, imm=0):
        return Seq()(f"buffer_load_dwordx2 {vr(dst,2)}, {voff}, {SWS}, {soff} offen{off(imm)} sc1")

    def poll_check(self, dst, voff, soff, imm=0, expect=None):
        ok, spin = self.lab("ok"), self.lab("spin")

        def cmp(s):
            if expect is None:
                s(f"v_cmp_ne_u64 vcc, {sTAG}, {vr(dst,2)}")
            else:
                s(f"v_or_b32 {vr(dst+3)}, 15, {vr(dst+1)}")
                s(f"v_mov_b32 {vr(dst+2)}, {vr(dst)}")
                s(f"v_cmp_ne_u64 vcc, {vr(dst+2,2)}, {vr(expect,2)}")
        s = Seq()
        cmp(s)
        s(f"s_cbranch_vccnz {spin}")
        s(f"{ok}:")
        t = Seq()
        t(f"{spin}:")
        t(f"s_sub_u32 {sBUD}, {sBUD}, 1")
        t("s_cbranch_scc1 L_abort")
        t.ext(self.poll_issue(dst, voff, soff, imm))
        t("s_waitcnt vmcnt(0)")
        cmp(t)
        t(f"s_cbranch_vccnz {spin}")
        t(f"s_branch {ok}")
        self.tail.append(t)
        return s

    def publish(self, need, soff, imm=0):
        slow, back = self.lab("rel"), self.lab("reld")
        s = Seq()
        s(f"s_cmp_lg_u32 {sLOCAL}, 0", need=need)
        s(f"s_cbranch_scc1 {slow}")
        s(f"buffer_store_dwordx2 v[124:125], {vZ}, {SWS}, {soff} offen{off(imm)}")
        s(f"{back}:")
        t = Seq()
        t(f"{slow}:")
        t(f"buffer_store_dwordx2 v[124:125], {vZ}, {SWS}, {soff} offen{off(imm)} sc1")
        t(f"s_branch {back}")
        self.tail.append(t)
        return s

    def dma_voff(self, dst, n, stride, tmp, xmode=False):
        s = Seq()
        a, b, c = vr(tmp), vr(tmp + 1), vr(tmp + 2)
        s(f"v_lshrrev_b32 {a}, 3, v0")
        s(f"v_mul_u32_u24 {a}, {stride}, {a}")
        s(f"v_and_b32 {b}, 7, v0")
        if xmode:
            s(f"v_lshrrev_b32 {c}, 4, v0")
        else:
            s(f"v_bfe_u32 {c}, v0, 4, 1")
            s(f"v_lshlrev_b32 {c}, 2, {c}")
        s(f"v_xor_b32 {b}, {b}, {c}")
        for i in range(n):
            flip = ((i & 1) << 2) if xmode else ((i & 1) << 1)
            s(f"v_xor_b32 {c}, {flip}, {b}")
            s(f"v_lshl_add_u32 {c}, {c}, 4, {a}")
            s(f"v_add_u32 {vr(dst+i)}, {i*(8*stride-1024)}, {c}")
        return s

    def tr32_addr(self, dst, tmp):
        s = Seq()
        a, b, c = vr(tmp), vr(tmp + 1), vr(tmp + 2)
        d = vr(dst)
        s(f"v_bfe_u32 {a}, v0, 2, 2")
        s(f"v_lshrrev_b32 {b}, 5, v0")
        s(f"v_lshl_add_u32 {d}, {b}, 3, {a}")
        s(f"v_lshlrev_b32 {d}, 7, {d}")
        s(f"v_lshrrev_b32 {a}, 1, {a}")
        s(f"v_lshl_add_u32 {a}, {a}, 1, {b}")
        s(f"v_bfe_u32 {b}, v0, 4, 1")
        s(f"v_xor_b32 {a}, {a}, {b}")
        s(f"v_lshl_add_u32 {d}, {a}, 5, {d}")
        s(f"v_and_b32 {a}, 1, v0")
        s(f"v_bfe_u32 {b}, v0, 1, 1")
        s(f"v_lshl_add_u32 {a}, {a}, 1, {b}")
        s(f"v_lshl_add_u32 {d}, {a}, 3, {d}")
        return s

    def split_first(self, src, d, tmp):
        s = Seq()
        s(f"v_cvt_pk_bf16_f32 {vr(d+1)}, {src}, 0")
        s(f"v_lshlrev_b32 {vr(tmp)}, 16, {vr(d+1)}")
        s(f"v_sub_f32 {vr(tmp)}, {src}, {vr(tmp)}")
        s(f"v_cvt_pk_bf16_f32 {vr(d)}, {src}, {vr(tmp)}")
        return s

    def split_second(self, src, d, tmp):
        s = Seq()
        s(f"v_cvt_pk_bf16_f32 {vr(d)}, {src}, {src}")
        s(f"v_and_b32 {vr(tmp)}, 0xffff0000, {vr(d)}")
        s(f"v_sub_f32 {vr(tmp)}, {src}, {vr(tmp)}")
        s(f"v_cvt_pk_bf16_f32 {vr(d+1)}, {vr(tmp)}, 0")
        return s

    def selector(self, d):
        s = Seq()
        s(f"v_bfe_u32 {vr(d)}, v0, 2, 1")
        s(f"v_bfe_u32 {vr(d+1)}, v0, 4, 1")
        s(f"v_cmp_eq_u32 vcc, {vr(d)}, {vr(d+1)}")
        s(f"v_mov_b32 {vr(d+1)}, 0x3f803f80")
        s(f"v_cndmask_b32 {vr(d)}, 0, {vr(d+1)}, vcc")
        for i in (1, 2, 3):
            s(f"v_mov_b32 {vr(d+i)}, {vr(d)}")
        return s

    def stash(self, s, name, reg):
        idx = self.stashed.setdefault(name, 16 + len(self.stashed))
        assert idx < 48
        s(f"v_accvgpr_write_b32 a{idx}, {reg}")

    def fetch(self, s, name, reg):
        s(f"v_accvgpr_read_b32 {reg}, a{self.stashed[name]}")

    def prologue(self):
        s = Seq()
        s("s_cmp_ge_u32 s2, 256")
        s("s_cbranch_scc1 L_end")
        s("s_load_dwordx2 s[8:9], s[0:1], 0")
        s("s_load_dwordx16 s[80:95], s[0:1], 0")
        s("s_load_dwordx2 s[36:37], s[0:1], 72")
        s("s_getpc_b64 s[96:97]")
        s("v_lshrrev_b32 v4, 6, v0")
        s("v_and_b32 v0, 63, v0")
        s(f"v_readfirstlane_b32 {sW}, v4")
        s(f"s_lshr_b32 {sR}, s2, 3")
        s(f"s_lshl2_add_u32 {sT0}, {sR}, {sW}")
        s(f"s_mul_i32 {sT0}, {sT0}, 384")
        s("v_min_u32 v48, 2, v0")
        s(f"v_lshl_add_u32 v48, v48, 7, {sT0}")
        s("v_min_u32 v48, CODE_BYTES, v48")
        s("global_load_dword v255, v48, s[96:97]")
        s(f"s_and_b32 {sG}, s2, 7")
        s(f"s_lshr_b32 {sB}, {sR}, 3")
        s(f"s_and_b32 {sPAN}, {sR}, 7")
        s(f"s_lshl2_add_u32 {sBLK}, {sG}, {sB}")
        s(f"s_lshl_b32 {sM0W}, {sW}, 12")
        s(f"s_lshl2_add_u32 {sCX}, {sBLK}, {sW}")
        s(f"s_lshl_b32 {sCX}, {sCX}, 14")
        s("s_mov_b32 s10, 0x200000")
        s("s_mov_b32 s11, 0x20000")
        s("v_lshrrev_b32 v16, 3, v0")
        s("v_and_b32 v17, 7, v0")
        s("v_lshrrev_b32 v18, 4, v0")
        s("v_xor_b32 v4, v17, v18")
        s("v_lshlrev_b32 v4, 4, v4")
        s("v_lshl_add_u32 v4, v16, 10, v4")
        s("v_xor_b32 v5, 64, v4")
        s("v_add_u32 v5, 7168, v5")
        st0 = self.stage_dma(0)
        self.lazy(s, 0)
        s.ext(st0[0] + st0[1])
        self.lazy(s, 1)
        s("v_and_b32 v18, 1, v18")
        s("v_lshlrev_b32 v18, 2, v18")
        s("v_xor_b32 v6, v17, v18")
        s("v_lshlrev_b32 v6, 4, v6")
        s("v_mul_u32_u24 v16, 3072, v16")
        s("v_add_u32 v6, v6, v16")
        s("v_xor_b32 v7, 32, v6")
        s(f"v_add_u32 v7, {8*3072-1024}, v7")
        s(f"s_mul_i32 {sCW}, {sW}, {16*3072}")
        s(f"s_lshl_b32 {sT0}, {sPAN}, 7")
        s(f"s_add_u32 {sCW}, {sCW}, {sT0}")
        s(f"s_add_u32 {sCW}, {sCW}, 1024")
        s(f"s_mov_b32 {sJ}, {sPAN}")
        s("s_mov_b64 s[12:13], s[82:83]")
        s("s_mov_b32 s14, 0x180000")
        s("s_mov_b32 s15, 0x20000")
        s.ext(st0[2] + st0[3])
        s(f"s_lshl2_add_u32 {sTW}, s2, {sW}")
        s(f"s_lshr_b32 {sT1}, {sTW}, 1")
        s(f"s_mul_i32 {sT1}, {sT1}, 3072")
        s(f"s_and_b32 {sT2}, {sTW}, 1")
        s(f"s_lshl_b32 {sT2}, {sT2}, 9")
        s(f"s_add_u32 {sT1}, {sT1}, {sT2}")
        s("v_and_b32 v49, 3, v0")
        s("v_lshlrev_b32 v49, 7, v49")
        s(f"buffer_load_dword v254, v49, {SWQ}, {sT1} offen offset:1024")
        s("v_bfe_u32 v50, v0, 2, 1")
        s("v_lshl_add_u32 v50, v50, 11, v49")
        s(f"v_add_u32 v50, {sT1}, v50")
        s(f"v_lshl_add_u32 v49, {sTW}, 9, v49")
        s(f"s_lshl_b32 {sT3}, {sG}, 7")
        s(f"s_add_u32 {sT3}, {sT3}, {EPOCH}")
        s(f"s_sub_u32 {sT4}, {sT3}, 128")
        s(f"s_max_u32 {sT4}, {sT4}, {EPOCH}")
        s(f"s_load_dwordx2 s[46:47], s[36:37], {sT3}")
        s(f"s_load_dwordx2 s[48:49], s[36:37], {sT4}")
        for dst, src in (("s[16:17]", "s[84:85]"), ("s[20:21]", "s[88:89]"), ("s[24:25]", "s[90:91]"), ("s[28:29]", "s[92:93]"),
                         ("s[32:33]", "s[94:95]")):
            s(f"s_mov_b64 {dst}, {src}")
        for w2, w3, nb in [("s18", "s19", 0x80000), ("s22", "s23", 0x1C0000), ("s26", "s27", 0x1C0000),
                           ("s30", "s31", 0x1C0000), ("s34", "s35", 0x200000), ("s38", "s39", WS_BYTES)]:
            s(f"s_mov_b32 {w2}, {nb}")
            s(f"s_mov_b32 {w3}, 0x20000")
        self.touch2 = Seq()(f"buffer_load_dword v253, v50, {SWQ}, 0 offen")(f"buffer_load_dword v252, v49, {SWO}, 0 offen")
        if self.p["t3"]:
            s(f"s_lshl2_add_u32 {sT0}, {sR}, {sW}")
            s(f"s_mul_i32 {sT1}, {sT0}, {12*1024}")
            s(f"s_lshl_b32 {sT0}, {sT0}, 12")
            s("v_min_u32 v51, 11, v0")
            s(f"v_lshl_add_u32 v51, v51, 10, {sT1}")
            s("v_min_u32 v52, 3, v0")
            s(f"v_lshl_add_u32 v52, v52, 10, {sT0}")
            self.touch2(f"buffer_load_dword v251, v51, {SWQ}, 0 offen offset:384")
            self.touch2(f"buffer_load_dword v250, v52, {SWO}, 0 offen offset:384")
        if self.p["tq"] < 0:
            s.ext(self.touch2)
        s(f"v_lshlrev_b32 {vL16}, 4, v0")
        s(f"v_mov_b32 {vZ}, 0")
        if self.p["stamps"]:
            s("v_mov_b32 v3, 0")
        s(f"v_add_u32 v8, {2*(8*3072-1024)}, v6")
        s(f"v_add_u32 v9, {2*(8*3072-1024)}, v7")
        for n in range(1, self.p["d0"]):
            s.ext(flat(self.stage_dma(n)))
        self.lazy(s, 2)
        s(f"s_and_b32 {sT0}, {sW}, 1")
        s(f"s_lshr_b32 {sT1}, {sW}, 1")
        s(f"s_lshl_b32 {sT2}, {sT0}, 1")
        s(f"s_or_b32 {sT2}, {sT2}, {sT1}")
        s(f"s_lshl_b32 {sT0}, {sT0}, 13")
        s("v_bfe_u32 v20, v0, 4, 1")
        s(f"v_lshl_add_u32 v20, v20, 12, {sT0}")
        s("v_and_b32 v23, 15, v0")
        s("v_lshl_add_u32 v20, v23, 7, v20")
        s("v_bfe_u32 v21, v0, 1, 3")
        s("v_lshrrev_b32 v22, 5, v0")
        s("v_xor_b32 v18, v21, v22")
        s(f"s_lshl_b32 {sT3}, {sT2}, 1")
        s(f"v_xor_b32 v21, {sT3}, v18")
        s("v_lshl_add_u32 v10, v21, 4, v20")
        for q in (1, 2, 3):
            s(f"v_xor_b32 v{10+q}, {32*q}, v10")
        s(f"s_lshl_b32 {sT0}, {sW}, 1")
        s(f"v_xor_b32 v21, {sT0}, v18")
        s("v_lshlrev_b32 v21, 4, v21")
        s("v_lshl_add_u32 v19, v23, 7, v21")
        s("v_bfe_u32 v22, v0, 4, 1")
        s("v_lshl_add_u32 v19, v22, 3, v19")
        s.ext(self.tr32_addr(14, 20))
        s(f"s_lshl_b32 {sT1}, {sT1}, 6")
        s(f"s_lshl_b32 {sT3}, {sT2}, 12")
        s(f"s_or_b32 {sT3}, {sT3}, {sT1}")
        s(f"v_xor_b32 v14, {sT3}, v14")
        for q in (1, 2, 3):
            s(f"v_xor_b32 v{14+q}, {4096*q}, v14")
        s.ext(self.selector(120))
        s("v_mov_b32 v124, 0")
        s("v_mov_b32 v125, 0")
        return s

    def deferred(self):
        G = []

        def grp():
            G.append(Seq())
            return G[-1]

        def each(txt):
            for ln in txt.strip().split("\n"):
                grp()(ln)

        def stash(name, reg):
            self.stash(grp(), name, reg)
        each(f"""
            s_getreg_b32 {sXCC}, hwreg(HW_REG_XCC_ID)
            s_and_b32 {sXCC}, {sXCC}, 15
            s_mov_b32 {sBUD}, 0x80000
            s_and_b32 {sT2}, {sW}, 1
            s_lshr_b32 {sT3}, {sW}, 1
            s_lshl_b32 {sKST}, {sJ}, 1
            s_add_u32 {sKST}, {sKST}, {sT3}
            s_lshl_b32 {sKFL}, {sKST}, 6
            s_lshl_b32 {sKST}, {sKST}, 7
            s_lshl_b32 {sT4}, {sBLK}, 1
            s_add_u32 {sT4}, {sT4}, {sT2}
            s_add_u32 {sKST}, {sKST}, {sT4}
            s_lshl_b32 {sKST}, {sKST}, 10
            s_add_u32 {sKFL}, {sKFL}, {sT4}
            s_lshl_b32 {sKFL}, {sKFL}, 8
            s_add_u32 {sKFL}, {sKFL}, {KFL}
            s_lshl_b32 {sEXW}, {sT3}, 2
            s_add_u32 {sEXW}, {sEXW}, {sT2}
            s_lshl_b32 {sEXW}, {sEXW}, 10
            s_add_u32 {sEXW}, {sEXW}, {R3}
            s_lshl_b32 {sM0D}, {sW}, 13
            v_and_b32 v64, 15, v0
            v_lshlrev_b32 v64, 4, v64
            v_lshrrev_b32 v65, 5, v0
            v_lshl_add_u32 v65, v65, 8, v64""")
        stash("vlane", "v65")
        each(f"""
            v_bfe_u32 v66, v0, 4, 1
            v_lshl_add_u32 v67, v66, 11, v65
            v_add_u32 v67, {sEXW}, v67""")
        stash("vexw", "v67")
        each(f"""
            v_lshl_add_u32 v67, v66, 16, v65
            v_add_u32 v67, {VBUF}, v67""")
        stash("vgst", "v67")
        each("""
            v_lshrrev_b32 v66, 4, v0
            v_lshl_add_u32 v67, v66, 9, v64""")
        stash("ord", "v67")
        each(f"""
            v_bfe_u32 v64, v0, 2, 2
            v_lshl_add_u32 v67, v66, 3, v64
            v_lshlrev_b32 v67, 7, v67
            v_lshrrev_b32 v64, 1, v64
            v_and_b32 v66, 1, v66
            v_lshl_add_u32 v64, v64, 1, v66
            v_xor_b32 v64, {sW}, v64
            v_lshl_add_u32 v67, v64, 5, v67
            v_and_b32 v64, 3, v0
            v_lshl_add_u32 v67, v64, 3, v67""")
        stash("wotr", "v67")
        each(f"""
            v_bfe_u32 v65, v0, 2, 1
            v_lshl_add_u32 v64, v65, 4, v64
            s_lshl_b32 {sT0}, {sW}, 2
            v_add_lshl_u32 v64, {sT0}, v64, 3""")
        stash("opoll", "v64")
        each("v_lshrrev_b32 v64, 3, v0\nv_lshlrev_b32 v65, 11, v64")
        for i in range(4):
            each(f"v_sub_u32 v66, v{6+i}, v65")
            if i:
                each(f"v_subrev_u32 v66, {16384*i}, v66")
            stash(f"w1k{i}", "v66")
        for i in range(2):
            each(f"v_lshl_add_u32 v66, v64, 9, v{6+i}")
            if i:
                each("v_add_u32 v66, 4096, v66")
            stash(f"gu{i}", "v66")
        each(f"""
            v_and_b32 v64, 0x7ff, v14
            s_lshl_b32 {sT0}, {sT2}, 11
            s_or_b32 {sT0}, {sT0}, 0x10000
            v_xor_b32 v65, {sT0}, v64""")
        stash("gutr", "v65")
        each(f"""
            s_lshl_b32 {sT0}, {sT2}, 5
            v_xor_b32 v65, {sT0}, v64
            v_add_u32 v65, {sM0W}, v65""")
        stash("wdtr", "v65")
        each(f"""
            s_lshl_b32 {sT1}, {sJ}, 2
            s_add_u32 {sT1}, {sT1}, {sW}
            s_lshl_b32 {sLB}, {sBLK}, 11
            s_add_u32 {sLB}, {sLB}, {LFL}
            s_lshl_b32 {sOF}, {sT1}, 3
            s_add_u32 {sOF}, {sOF}, {sLB}
            s_lshl_b32 {sOD}, {sBLK}, 16
            s_lshl_b32 {sT0}, {sT1}, 5
            s_add_u32 {sOUTO}, {sOD}, {sT0}
            s_add_u32 {sOD}, {sOD}, {OBUF}
            s_lshl_b32 {sOST}, {sT1}, 10
            s_add_u32 {sOST}, {sOST}, {sOD}
            s_add_u32 {sOD}, {sOD}, {sM0W}
            s_and_b32 {sT0}, {sT1}, 15
            s_lshl_b32 {sT0}, {sT0}, 7
            s_add_u32 {sT0}, {sT0}, {sLB}
            v_mov_b32 v65, {sT0}
            s_lshl_b32 {sT0}, {sG}, 7
            s_add_u32 {sT0}, {sT0}, {SFL}
            v_mov_b32 v66, {sT0}""")
        grp()("v_cmp_lt_u32 vcc, 31, v0\nv_cndmask_b32 v64, v65, v66, vcc")
        stash("touch", "v64")
        each(f"""
            s_lshl_b32 {sT0}, {sT1}, 6
            s_lshl_b32 {sT4}, {sBLK}, 1
            s_sub_u32 {sT4}, {sT4}, 8
            s_add_u32 {sT0}, {sT0}, {sT4}
            s_lshl_b32 {sT0}, {sT0}, 10""")
        for i in range(4):
            each(f"s_add_u32 {sKV[i]}, {sT0}, {2048*i}")
            grp()(f"s_cmp_ge_u32 {sBLK}, {4-i}\ns_cselect_b32 {sKV[i]}, {sKV[i]}, {BIGOFF}\ns_cselect_b32 {sONE[i]}, 0x3f803f80, 0")
        each(f"""
            s_mov_b32 s68, 0x0000ffff
            s_mov_b32 s69, 0x0000ffff
            v_min_u32 v64, 7, v0
            v_add_u32 v64, {sT4}, v64
            v_max_i32 v64, 0, v64
            s_lshl_b32 {sT4}, {sG}, 3
            v_cmp_gt_u32 {sEX}, {sT4}, v64
            s_lshr_b32 {sT0}, {sT1}, 1
            s_lshl_b32 {sT0}, {sT0}, 6
            v_add_lshl_u32 v64, {sT0}, v64, 8
            v_add_u32 v64, {KFL}, v64
            s_mov_b32 s87, 0
            v_mov_b32 v65, {sKFL}
            v_and_b32 v66, 7, v0
            v_lshlrev_b32 v66, 6, v66
            v_bfe_u32 v67, v0, 3, 2
            v_add_lshl_u32 v66, v66, v67, 1
            v_add_lshl_u32 v66, {sT4}, v66, 8
            v_add_u32 v66, {KFL - 128}, v66""")
        grp()("v_cmp_lt_u32 vcc, 31, v0\nv_cndmask_b32 v65, v64, v65, vcc\nv_cndmask_b32 v66, v64, v66, vcc")
        stash("kpoll", "v65")
        stash("vpoll", "v66")
        each(f"""
            s_lshl_b32 {sT0}, {sG}, 2
            s_add_u32 {sT0}, {sT0}, {sW}
            s_lshl_b32 {sLW}, {sT0}, 11
            s_add_u32 {sLW}, {sLW}, {LFL}
            s_lshl_b32 {sHS}, {sT0}, 16
            s_add_u32 {sHS}, {sHS}, {HBUF}
            s_mul_i32 {sAST}, {sT0}, {2*112*1024}
            s_lshl_b32 {sT0}, {sR}, 12
            s_add_u32 {sAST}, {sAST}, {sT0}
            s_lshl_b32 {sT0}, {sT3}, 11
            s_add_u32 {sAST}, {sAST}, {sT0}
            s_add_u32 {sAST}, {sAST}, {ACT}
            s_lshl_b32 {sAF}, {sR}, 3
            s_add_u32 {sAF}, {sAF}, {sLW}
            s_min_u32 {sT0}, {sR}, 27
            s_lshl_b32 {sGU}, {sT0}, 7
            s_mul_i32 {sT0}, {sW}, {16*3584}
            s_add_u32 {sGU}, {sGU}, {sT0}
            s_lshl_b32 {sC3}, {sG}, 12""")
        grp()(f"s_cmp_eq_u32 {sG}, 7\ns_cselect_b32 {sC4}, 0, {sC3}")
        each(f"""
            s_mul_i32 {sWDN}, {sW}, {448*1024}
            s_lshl_b32 {sT0}, {sJ}, 7
            s_add_u32 {sWDN}, {sWDN}, {sT0}
            s_mul_i32 {sAA}, {sBLK}, {2*112*1024}
            s_mul_i32 {sT0}, {sW}, {28*1024}
            s_add_u32 {sAA}, {sAA}, {sT0}
            s_add_u32 {sAA}, {sAA}, {ACT}
            s_mul_i32 {sTW}, {sTW}, {14*128}
            v_min_u32 v64, 13, v0
            v_lshlrev_b32 v64, 7, v64""")
        stash("tw", "v64")
        each("""
            v_and_b32 v64, 31, v0
            v_lshrrev_b32 v65, 5, v0
            v_lshlrev_b32 v65, 2, v65
            v_sub_u32 v64, v64, v65""")
        for r in range(16):
            t = vr(66 + (r & 3))
            each(f"""
                v_subrev_u32 {t}, {8*(r>>2) + (r&3)}, v64
                v_ashrrev_i32 {t}, 31, {t}
                v_and_b32 {t}, 0xf149f2ca, {t}
                v_accvgpr_write_b32 a{r}, {t}""")
        for i in range(5):
            each(f"v_mov_b32 v64, {sONE[i] if i < 4 else '0x3f803f80'}")
            for k in range(16):
                each(f"v_accvgpr_write_b32 {ar(AV_+16*i+k)}, v64")
        for lo, hi in ((sTAGlo, sTAGhi), (sPTAGlo, sPTAGhi)):
            each(f"""
                s_mul_i32 {lo}, {lo}, 1664525
                s_add_u32 {lo}, {lo}, 1013904223
                s_mul_i32 {hi}, {hi}, 22695477
                s_add_u32 {hi}, {hi}, 0x9e3779b1""")
        each(f"""
            v_mov_b32 v64, {sTAGlo}
            v_mov_b32 v65, {sPTAGlo}
            v_cndmask_b32 v64, v64, v65, {sEX}""")
        stash("explo", "v64")
        each(f"""
            v_mov_b32 v64, {sTAGhi}
            v_mov_b32 v65, {sPTAGhi}
            v_cndmask_b32 v64, v64, v65, {sEX}
            v_or_b32 v64, 15, v64""")
        stash("exphi", "v64")
        return [g.l for g in G]

    def stage_dma(self, n):
        slot = SLOT[n] * 16384
        tok = f"st{n}"
        g = [Seq() for _ in range(4)]
        if n < 8:
            xp = self.p["x_pol"]
            g[0](f"s_add_u32 m0, {sM0W}, {slot}")
            g[0](f"s_lshl_b32 {sRS}, {sPAN}, 7")
            g[0](f"s_add_u32 {sRS}, {sRS}, {sCX}")
            g[0](f"buffer_load_dwordx4 v4, {SX}, {sRS} offen {xp} lds", tok=tok)
            g[1](f"s_add_u32 m0, {sM0W}, {slot}")
            g[1](f"buffer_load_dwordx4 v5, {SX}, {sRS} offen offset:1024 {xp} lds", tok=tok)
            g[1](f"s_add_u32 m0, {sM0W}, {slot + 2048}")
            g[1](f"s_mul_i32 {sRS}, {sPAN}, {64*3072}")
            g[2](f"s_add_u32 m0, {sM0W}, {slot + 2048}")
            g[3](f"s_add_u32 m0, {sM0W}, {slot + 2048}")
            g[2](f"s_add_u32 {sRS}, {sRS}, {sCW}")
            g[2](f"buffer_load_dwordx4 v6, {SWQ}, {sRS} offen lds", tok=tok)
            g[3](f"buffer_load_dwordx4 v7, {SWQ}, {sRS} offen offset:1024 lds", tok=tok)
            g[3](f"s_add_u32 {sPAN}, {sPAN}, 1")
            g[3](f"s_and_b32 {sPAN}, {sPAN}, 7")
        elif n < 16:
            a = g[0]
            if n == 8:
                a(f"s_lshr_b32 {sRS}, {sW}, 1")
                a(f"s_add_u32 {sPAN}, {sJ}, {sRS}")
                a(f"s_and_b32 {sPAN}, {sPAN}, 7")
                a(f"s_and_b32 {sRS}, {sW}, 1")
                a(f"s_mul_i32 {sCW}, {sRS}, {32*3072}")
                a(f"s_lshl_b32 {sRS}, {sJ}, 7")
                a(f"s_add_u32 {sCW}, {sCW}, {sRS}")
                a(f"s_add_u32 {sCW}, {sCW}, 2048")
            if n == 12:
                a(f"s_sub_u32 {sCW}, {sCW}, 2048")
            a(f"s_add_u32 m0, {sM0W}, {slot}")
            a(f"s_mul_i32 {sRS}, {sPAN}, {64*3072}")
            a(f"s_add_u32 {sRS}, {sRS}, {sCW}")
            for i in range(4):
                if i:
                    g[i](f"s_add_u32 m0, {sM0W}, {slot}")
                g[i](f"buffer_load_dwordx4 v{6+i}, {SWQ}, {sRS} offen{off(1024*i)} lds", tok=tok)
            g[3](f"s_add_u32 {sPAN}, {sPAN}, 2")
            g[3](f"s_and_b32 {sPAN}, {sPAN}, 7")
        elif n < 20:
            a = g[0]
            if n == 16:
                for i in range(4):
                    self.fetch(a, f"w1k{i}", f"v{6+i}")
                a(f"s_lshl_b32 {sCW}, {sW}, 15")
                a(f"s_lshl_b32 {sRS}, {sJ}, 7")
                a(f"s_add_u32 {sCW}, {sCW}, {sRS}")
            for i in range(4):
                g[i](f"s_add_u32 m0, {sM0W}, {slot}")
                if i == 0:
                    a(f"s_add_u32 {sRS}, {sCW}, {(n-16)*128*1024}")
                g[i](f"buffer_load_dwordx4 v{6+i}, {SWO}, {sRS} offen{off(1024*i)} lds", tok=tok)
        else:
            c = n - 20
            for i in range(4):
                g[i](f"s_add_u32 m0, {sM0W}, {slot + 2048*(i >> 1)}")
                if i == 0:
                    g[0](f"s_add_u32 {sGS}, {sC3}, {c*4096}")
                    g[0](f"s_and_b32 {sGS}, {sGS}, 0x7000")
                    g[0](f"s_mul_i32 {sGS}, {sGS}, 56")
                    g[0](f"s_add_u32 {sGS}, {sGS}, {sGU}")
                g[i](f"buffer_load_dwordx4 v{14 + (i & 1)}, {(SWG, SWU)[i >> 1]}, {sGS} offen{off(1024*(i & 1))} lds", tok=tok)
        return [x.l for x in g]

    def chunk4(self, a, dst, c):
        a(f"s_add_u32 {dst}, {sC4}, {c*4096}")
        if c:
            a(f"s_sub_u32 {sPAN}, {dst}, {7*4096}")
            a(f"s_cselect_b32 {dst}, {dst}, {sPAN}")

    def claim(self, slot, owner):
        prev = self.lds[slot]
        self.lds[slot] = owner
        if prev is None:
            return ()
        assert prev[0] == "wd" and self.seen["dr"] >= 8 * (prev[1] + 1), ("LDS slot busy", slot, prev, owner)
        return (f"wdr{prev[1]}",)

    def release(self, *slots):
        for a in slots:
            assert self.lds[a] is not None and self.lds[a][0] != "wd", (a, self.lds[a])
            self.lds[a] = None

    def wd_piece(self, n):
        hc, i = n >> 2, n & 3
        slot = self.wd_slots[hc]
        a = Seq()
        a(f"s_add_u32 m0, {sM0W}, {slot*16384}", need=self.claim(slot, ("wd", hc)) if i == 0 else ())
        if i == 0 and hc % 2 == 0:
            self.chunk4(a, sWS_, hc >> 1)
            a(f"s_lshl_b32 {sWS_}, {sWS_}, 4")
            a(f"s_add_u32 {sWS_}, {sWS_}, {sWDN}")
        elif i == 0:
            a(f"s_add_u32 {sWS_}, {sWS_}, 32768")
        a(f"buffer_load_dwordx4 v{6+i}, {SWD}, {sWS_} offen{off(1024*i)} lds", tok=f"wd{hc}")
        return a.l

    def wd_read(self, n):
        hc, i = n >> 3, n & 7
        assert hc < self.wd_max, ("W_down home still in use", hc)
        assert self.seen["wd"] >= 4 * (hc + 1), ("W_down half-chunk not issued", hc)
        slot = self.wd_slots[hc] * 16384
        a = Seq()
        hi = slot & ~0xFFFF
        if hi != self.wd_hi:
            a(f"v_xor_b32 v17, {hi ^ self.wd_hi}, v17")
            a(f"v_xor_b32 v18, {hi ^ self.wd_hi}, v18")
            self.wd_hi = hi
        k, ct, jj = i >> 2, (i >> 1) & 1, i & 1
        a(f"ds_read_b64_tr_b16 {ar(WD_HOME[hc] + 2*i, 2)}, v{17+ct} offset:{(slot & 0xFFFF) + 2048*k + 512*jj}",
          tok=f"wdr{hc}", need=f"wd{hc}")
        return a.l

    def take(self, kind, n):
        out = []
        for _ in range(n):
            c = self.cnt[kind]
            if kind == "wo" or kind == "gu":
                base = 16 if kind == "wo" else 20
                if c % 4 == 0:
                    self.cur[kind] = self.stage_dma(base + c // 4)
                    nd = self.claim(SLOT[base + c // 4], (kind, c // 4))
                    [x for x in self.cur[kind][0] if "m0" in x.defs][0].need = nd
                pc = list(self.cur[kind][c % 4])
                if kind == "gu" and self.ts_reg == "v18":
                    a = Seq()
                    self.fetch(a, f"gu{c & 1}", "v18")
                    pc = a.l + pc[:-1] + [Ins(pc[-1].text.replace(f"v{14 + (c & 1)},", "v18,", 1), tok=pc[-1].tok)]
                out.append(pc)
            elif kind == "wd":
                out.append(self.wd_piece(c))
            elif kind == "dr":
                out.append(self.wd_read(c))
            elif kind == "k":
                kt = 7 - c
                out.append(Seq()(f"buffer_load_dwordx4 {ar(AK_+4*kt,4)}, {vL16}, {SWS}, {sKV[kt>>1]} offen{off(1024*(kt&1))} sc1").l)
            elif kind == "v":
                a = Seq()(f"s_mov_b64 exec, {sVMASK}")
                for kt in (7 - 2 * c, 6 - 2 * c):
                    for st in range(2):
                        a(f"buffer_load_dwordx4 {ar(AV_+8*kt+4*st,4)}, v11, {SWS}, {sKV[kt>>1]} offen{off(1024*(kt&1)+512*st)} sc1")
                a("s_mov_b64 exec, -1")
                out.append(a.l)
            elif kind == "od":
                q, hf, i = c >> 3, (c >> 2) & 1, c & 3
                slot = (8 if q == 0 else OB_SLOT) + hf
                a = Seq()(f"s_add_u32 m0, {sM0W}, {slot*16384}", need=self.claim(slot, ("od", q)) if i == 0 else ())
                if i == 0 and c:
                    a(f"s_add_u32 {sOD}, {sOD}, 16384")
                a(f"buffer_load_dwordx4 {vL16}, {SWS}, {sOD} offen{off(1024*i)} {self.p['ld_local']} lds", tok=f"od{q}{hf}")
                out.append(a.l)
            elif kind == "tw":
                a = Seq()
                self.fetch(a, "tw", self.ts_reg)
                a(f"buffer_load_dword a{184+c}, {self.ts_reg}, {(SWG, SWU, SWD)[c]}, {sTW} offen")
                out.append(a.l)
            elif kind == "ts":
                a = Seq()
                self.fetch(a, "touch", self.ts_reg)
                a(f"buffer_load_dword a187, {self.ts_reg}, {SWS}, 0 offen {self.p['pt_pol']}")
                out.append(a.l)
            self.cnt[kind] = c + 1
        return out

    def events(self, key):
        vm, ds = [], []
        self.seen = dict(self.cnt)
        for kind, n in self.p["bg"].get(key, ()):
            (ds if kind == "dr" else vm).extend(self.take(kind, n))
        return vm, ds

    def p1(self):
        p = self.p
        D = p["dist"]
        X, AK, AV, AQ, WR = 128, 32, 48, 64, 80
        XS, CS = 112, 116
        SEL = vr(120, 4)
        PX = R3 + 24576
        self.ts_reg = "v18"
        s = Seq()
        dfr = self.deferred()
        if p["tq"] >= 0:
            dfr.insert(p["tq"], self.touch2.l)
        s.ext(flat(dfr[:p["pre1"]]))
        dfr = dfr[p["pre1"]:]
        self.lazy(s, 3)
        for n in range(p["d0"], D):
            s.ext(flat(self.stage_dma(n)))
        s.ext(self.stamp("issued"))

        def stage_of(u):
            return u if u < 8 else 8 + (u - 8) // 2

        def reads(u):
            g = []
            slot = (SLOT[stage_of(u)] * 16384) & 0xFFFF
            a = Seq()
            if u == 8:
                assert SLOT[8] < 4
                a("v_bfe_u32 v18, v14, 12, 2")
                a("v_and_b32 v14, 0x7ff, v14")
                a("v_lshl_add_u32 v14, v18, 11, v14")
                for q in (1, 2, 3):
                    a(f"v_xor_b32 v{14+q}, {2048*q}, v14")
            elif u and (SLOT[stage_of(u)] >= 4) != (SLOT[stage_of(u - 1)] >= 4):
                for q in range(10 if u < 8 else 14, 18):
                    a(f"v_xor_b32 v{q}, 0x10000, v{q}")
            o = slot + (2048 if u < 8 else 8192 * (u & 1))
            for q in range(4):
                f = WR + 16 * (u & 1) + 4 * q
                if u < 8:
                    g.append(Seq()(f"ds_read_b128 {vr(X+16*u+4*q,4)}, v{10+q} offset:{slot}").l)
                g.append(Seq()(f"ds_read_b64_tr_b16 {vr(f,2)}, v{14+q} offset:{o}").l)
                g.append(Seq()(f"ds_read_b64_tr_b16 {vr(f+2,2)}, v{14+q} offset:{o+512}").l)
            return groups(a, 1), g

        def work(u):
            m = Seq()
            ps = u >> 3
            acc = (AK, AV, AQ)[ps]
            for q in range(4):
                xf, wf = vr(X + 16 * (u & 7) + 4 * q, 4), vr(WR + 16 * (u & 1) + 4 * q, 4)
                z = "0" if (u & 7) == 0 and q == 0 else None
                m(mf32(acc, xf, wf, z) if ps == 1 else mf32(acc, wf, xf, z))
                if ps == 0 and q in (0, 2):
                    m(mf16(XS, SEL, xf, z))
                if q < 2 or ps == 2:
                    m(mf16(CS, SEL, wf, z))
            if u == 23:
                m.l = m.l[:-2] + [m.l[-1], m.l[-2]]
            if ps == 0:
                for q in (0, 2):
                    for i in range(4):
                        r = vr(X + 16 * u + 4 * q + i)
                        m(f"v_dot2c_f32_bf16 v{124 + (i & 1)}, {r}, {r}")
            return m

        def rank1(src, acc, transposed):
            q = Seq()
            q.ext(self.split_second(src, 112, 18))
            q(mf32(acc, vr(112, 4), vr(20, 4)) if transposed else mf32(acc, vr(20, 4), vr(112, 4)))
            return q

        def scale_pack(acc, mul):
            q = Seq()
            for i in range(8):
                q(f"v_mul_f32 {vr(acc+2*i)}, {mul(2*i)}, {vr(acc+2*i)}")
                q(f"v_mul_f32 {vr(acc+2*i+1)}, {mul(2*i+1)}, {vr(acc+2*i+1)}")
                q(f"v_cvt_pk_bf16_f32 {vr(acc+i)}, {vr(acc+2*i)}, {vr(acc+2*i+1)}")
            return q

        ex = {}
        post = {}

        def add(u, seq, n=1):
            ex.setdefault(u, []).extend(groups(seq, n))
        a = Seq()
        for u in range(4):
            a(f"ds_read_b64 {vr(vXR+2*u,2)}, v19 offset:{u*4096}")
        xres = groups(a, 1)
        a = Seq()
        a(f"v_lshl_add_u32 v19, {sW}, 10, {vL16}")
        a(f"v_add_u32 v19, {PX}, v19")
        add(2, a)
        per = -(-len(dfr) // 7)
        for u in range(7):
            ex.setdefault(u, []).extend(dfr[u * per:(u + 1) * per])
        a = Seq()
        a(f"v_mov_b32 v114, v{CS}")
        a("v_add_f32 v113, v124, v125")
        a("ds_write_b96 v19, v[112:114]", tok="pxk")
        post[7] = a
        a = Seq()
        a(f"v_add_u32 v10, {sEXW}, {vL16}")
        self.fetch(a, "vlane", "v11")
        self.fetch(a, "vexw", "v12")
        self.fetch(a, "vgst", "v13")
        self.fetch(a, "explo", "v4")
        self.fetch(a, "exphi", "v5")
        a("v_xor_b32 v22, 2048, v19")
        a("v_xor_b32 v23, 1024, v19")
        add(7, a)
        a = Seq()
        a("s_barrier", need="pxk")
        a("ds_read_b64 v[20:21], v22")
        a("ds_read_b32 v127, v23 offset:8")
        add(8, a)
        a = Seq()
        a("v_add_f32 v124, v113, v21")
        a("v_add_f32 v20, v112, v20")
        a("v_mov_b32 v125, v124")
        a("v_add_f32 v127, v127, v114")
        a(f"v_mul_f32 v23, {1.0/512!r}, v20")
        a("v_permlane32_swap_b32 v124, v125")
        a("v_add_f32 v124, v124, v125")
        a(f"v_mul_f32 v124, {1.0/512!r}, v124")
        a("v_fma_f32 v124, -v23, v23, v124")
        a("v_max_f32 v124, 0, v124")
        a("v_add_f32 v124, 0x3727c5ac, v124")
        a("v_rsq_f32 v126, v124")
        a("v_mul_f32 v23, -0.5, v23")
        a.ext(self.split_first("v23", 20, 18))
        a("v_mov_b32 v22, 0")
        a("v_mov_b32 v23, 0")
        a("v_mov_b32 v114, 0")
        a("v_mov_b32 v115, 0")
        a.ext(rank1("v127", AK, True))
        add(9, a)
        e = scale_pack(AK, lambda i: "v126")
        e.l.insert(12, Ins(f"buffer_store_dwordx4 {vr(AK,4)}, {vL16}, {SWS}, {sKST} offen sc1", tok="kst"))
        e.l.insert(13, Ins(f"s_add_u32 {sT4}, {sKST}, 0x10000"))
        e(f"buffer_store_dwordx4 {vr(AK+4,4)}, {vL16}, {SWS}, {sT4} offen sc1", tok="kst")
        add(10, e)
        a = Seq()
        a(f"ds_write_b128 v10, {vr(AK,4)} offset:8192", tok="exw")
        a(f"s_and_b32 {sT4}, {sTAGhi}, -16")
        a(f"s_or_b32 {sT4}, {sT4}, {sXCC}")
        a(f"v_mov_b32 v124, {sTAGlo}")
        a(f"v_mov_b32 v125, {sT4}")
        add(11, a)
        a = Seq()
        a(f"ds_write_b128 v10, {vr(AK+4,4)} offset:{8192+2048}", tok="exw")
        a("v_mul_f32 v127, 0.5, v126")
        a.ext(self.split_first("v127", AQ, 18))
        add(12, a)
        a = Seq()
        for r in (AQ + 1, AQ + 2, AQ + 3, AQ + 5, AQ + 6, AQ + 7):
            a(f"v_mov_b32 v{r}, 0")
        a(f"v_mov_b32 v{AQ+4}, 0x3f803f80")
        add(13, a)
        add(14, Seq()(mf32(AK, vr(AQ, 4), vr(AQ + 4, 4), "0")))
        add(p["u_flk"], Seq()(f"buffer_store_dwordx2 v[124:125], {vZ}, {SWS}, {sKFL} offen sc1", need="kst"))
        a = Seq()
        a(f"v_mov_b32 v112, v{CS}")
        a("ds_write_b32 v19, v112 offset:12", tok="pxv")
        a("v_xor_b32 v19, 1024, v19")
        post[15] = a
        a = Seq()
        a("s_barrier", need="pxv")
        a("ds_read_b32 v127, v19 offset:12")
        add(16, a)
        a = Seq()
        a("v_add_f32 v127, v127, v112")
        a.ext(rank1("v127", AV, False))
        self.fetch(a, "kpoll", "v19")
        add(17, a)
        e = scale_pack(AV, lambda i: vr(AK + i))
        e.l.insert(12, Ins(f"buffer_store_dwordx4 {vr(AV,4)}, v13, {SWS}, {sKST} offen sc1", tok="vst"))
        e(f"buffer_store_dwordx4 {vr(AV+4,4)}, v13, {SWS}, {sKST} offen offset:512 sc1", tok="vst")
        add(18, e)
        assert p["u_pk"] >= 21
        add(p["u_pk"], self.poll_issue(192, "v19", "0"))
        add(19, Seq()(f"ds_write_b128 v12, {vr(AV,4)} offset:16384", tok="exw"))
        a = Seq()(f"ds_write_b128 v12, {vr(AV+4,4)} offset:{16384+512}", tok="exw")
        for r in range(16):
            a(f"v_accvgpr_read_b32 {vr(AK+r)}, a{r}")
        add(20, a)
        a = Seq()
        for r in range(16):
            a(f"v_sub_f32 {vr(AV+15-r)}, 0xf149f2ca, {vr(AK+15-r)}")
        add(21, a)
        self.flV = Seq()(f"buffer_store_dwordx2 v[124:125], {vZ}, {SWS}, {sKFL} offen offset:128 sc1", need="vst")
        add(p["u_flv"], self.flV)
        self.ckK = self.poll_check(192, "v19", "0", expect=4).ext(self.stamp("ck"))
        self.fetch(self.ckK, "vpoll", "v19")
        ex.setdefault(p["u_ck"], []).append(self.ckK.l)
        a = Seq()(f"v_mul_f32 v127, {0.25*1.4426950408889634!r}, v126")
        for nm, r in (("wotr", "v13"), ("ord", "v210"), ("gutr", "v214")):
            self.fetch(a, nm, r)
        a(f"v_lshl_add_u32 v215, {sW}, 11, {vL16}")
        a(f"v_add_u32 v215, {R3}, v215")
        a(f"v_lshl_add_u32 v12, {sW}, 11, v11")
        a(f"v_add_u32 v12, {R3}, v12")
        a(f"v_add_u32 v11, {VBUF}, v11")
        a(f"v_add_u32 v211, {R3}, v210")
        add(22, a)
        a = Seq()
        for nm, r in (("gu0", "v14"), ("gu1", "v15"), ("opoll", "v16"), ("wdtr", "v17")):
            self.fetch(a, nm, r)
        add(23, a)

        s("s_waitcnt lgkmcnt(0)")
        s("s_barrier", need="st0")
        s.ext(self.stamp("first"))
        if p["stamps"] and p.get("lazy") is not None:
            s(f"v_writelane_b32 v3, s96, {self.lazy_i}")
        assert D <= 3
        s.ext(flat(merge(reads(0)[1] + xres, self.stage_dma(D))))
        nd = D + 1
        pend = []
        for u in range(24):
            fill = []
            if u + 1 < 24:
                new = stage_of(u + 1) != stage_of(u)
                if new:
                    fill.append(Seq()("s_barrier", need=f"st{stage_of(u+1)}").l)
                fill += reads(u + 1)[1]
                if new and nd < 16:
                    pend += self.stage_dma(nd)
                    nd += 1
            fill += ex.get(u, [])
            if u + 2 < 24:
                fill += reads(u + 2)[0]
            k = len(pend) if u < 7 else min(2, len(pend))
            if u in (16, 18, 20, 22):
                self.release(SLOT[stage_of(u) - 2])
            vm, ds = self.events(("u", u))
            if u in (6, 9, 12, 17):
                assert all(self.cnt[a] == self.seen[a] for a in ("tw", "ts", "gu"))
            assert self.cnt["k"] == 0 or u > p["u_ck"]
            assert self.cnt["wo"] == 0 or (nd == 16 and len(pend) <= k)
            s.ext(weave(work(u), fill, pend[:k] + vm))
            pend = pend[k:]
            if u in post:
                s.ext(post[u])
            if u == 7:
                s.ext(self.stamp("kpass"))
            if u == 15:
                s.ext(self.stamp("vpass"))
        s.ext(rank1(f"v{CS}", AQ, True))
        s.ext(flat(ex.get(24, [])))
        vm, ds = self.events(("u", 24))
        assert self.cnt["k"] == 0 or p["u_ck"] <= 24
        s.ext(flat(vm[:2]))
        s("v_xor_b32 v18, 64, v17")
        e = scale_pack(AQ, lambda i: "v127")
        e.l.insert(12, Ins(f"ds_write_b128 v10, {vr(AQ,4)}", tok="exw"))
        e(f"ds_write_b128 v10, {vr(AQ+4,4)} offset:2048", tok="exw")
        s.ext(e)
        s.ext(flat(vm[2:]))
        s.ext(self.stamp("qpass"))
        return s

    S_, O_, Q_, MD_, MF_ = (128, 144), (160, 176), 200, 32, 48
    TILES = ([(8, 0), (8, 1), (9, 1)] + [(kt, 0) for kt in range(7, -1, -1)] + [(kt, 1) for kt in range(7, 0, -1)])

    def qk(self, i):
        kt, q = self.TILES[i]
        c = vr(self.MD_, 16) if kt == q + 8 else vr(self.MF_, 16) if kt == q else "0"
        return mf32(self.S_[i & 1], ar(AK_ + 4 * kt, 4), vr(self.Q_ + 4 * q, 4), c)

    def run_tiles(self, hooks):
        lag = self.p["lag"]
        s = Seq()
        s(self.qk(0))
        s.ext(flat(hooks.get(-1, [])))
        pend = []
        NP, PB = 2 * lag + 2, 64
        n = len(self.TILES)
        for i, (kt, q) in enumerate(self.TILES):
            S, O = self.S_[i & 1], self.O_[q]
            for half in range(2):
                ht = 2 * i + half
                b = Seq()
                if half == 0 and i + 1 < n:
                    b(self.qk(i + 1))
                for e in range(8):
                    r = S + 8 * half + e
                    b(f"v_exp_f32 {vr(r)}, {vr(r)}")
                    if e in ((3, 7) if half == 0 else (1, 5)) and pend and (pend[0][0] < 3 or i >= 3 + lag):
                        b(pend.pop(0)[1])
                P = PB + 4 * (ht % NP)
                for e in range(4):
                    r = S + 8 * half + 2 * e
                    b(f"v_cvt_pk_bf16_f32 {vr(P + e)}, {vr(r)}, {vr(r+1)}")
                pend.append((i, mf32(O, ar(AV_ + 8 * kt + 4 * half, 4), vr(P, 4), "0" if (i < 2 and half == 0) else None)))
                hk = hooks.get(ht, [])
                pos = [j for j, x in enumerate(b.l) if x.kind == "mfma"] or [3]
                per = -(-len(hk) // len(pos))
                out = []
                for j, x in enumerate(b.l):
                    out.append(x)
                    if j in pos:
                        k = pos.index(j)
                        clk = Clock()
                        clk.issue(x)
                        out += sched_gap(flat(hk[k * per:(k + 1) * per]), clk)
                s.ext(out)
                if ht == 5:
                    s.ext(self.stamp("own"))
                if ht == 22:
                    assert all(a[0] >= 11 for a in pend)
                    s.ext(self.finish_o(0))
                    s.ext(self.stamp("attA"))
        for a in pend:
            s(a[1])
        return s

    def finish_o(self, q):
        O = self.O_[q]
        back = self.lab("att")
        slow = self.slow_softmax(q, back)
        s = Seq()
        if q:
            s(f"s_add_u32 {sT1}, {sOST}, 32768")
        s(f"v_subrev_u32 v208, 0x2b800000, {vr(O+8)}")
        s(f"v_cmp_lt_u32 vcc, 0x28000000, v208")
        if self.p["force_slow"]:
            s(f"s_branch {slow}")
        else:
            s(f"s_cbranch_vccnz {slow}")
        s(f"{back}:")
        s(f"v_rcp_f32 {vr(O+8)}, {vr(O+8)}")
        for i in range(4):
            s(f"v_mul_f32 {vr(O+2*i)}, {vr(O+8)}, {vr(O+2*i)}")
            s(f"v_mul_f32 {vr(O+2*i+1)}, {vr(O+8)}, {vr(O+2*i+1)}")
            s(f"v_cvt_pk_bf16_f32 {vr(O+i)}, {vr(O+2*i)}, {vr(O+2*i+1)}")
        s(f"buffer_store_dwordx4 {vr(O,4)}, {vL16}, {SWS}, {sT1 if q else sOST} offen {self.p['st_local']}", tok=f"ost{q}")
        return s

    AC_ = (112, 104)

    def acc_init(self, q):
        e = Seq()
        for u in range(2):
            src, dd = vXR + 4 * q + 2 * u, self.AC_[q] + 4 * u
            e(f"v_lshlrev_b32 {vr(dd)}, 16, {vr(src)}")
            e(f"v_and_b32 {vr(dd+1)}, 0xffff0000, {vr(src)}")
            e(f"v_lshlrev_b32 {vr(dd+2)}, 16, {vr(src+1)}")
            e(f"v_and_b32 {vr(dd+3)}, 0xffff0000, {vr(src+1)}")
        return e

    def attention(self):
        p = self.p
        Q = self.Q_
        self.ts_reg = "v213"
        self.wd_max = 6
        s = Seq()
        s("s_barrier", need="exw")
        s(f"ds_read_b128 {vr(Q,4)}, v215")
        s(f"ds_read_b128 {ar(AK_+32,4)}, v215 offset:8192")
        s(f"ds_read_b128 {vr(Q+4,4)}, v215 offset:1024")
        s(f"s_mov_b64 exec, {sVMASK}")
        for i in range(4):
            s(f"ds_read_b128 {ar(AV_+64+4*i,4)}, v12 offset:{16384+512*i}")
        s("s_mov_b64 exec, -1")
        s(f"ds_read_b128 {ar(AK_+36,4)}, v215 offset:{8192+1024}")
        s.ext(self.stamp("exch"))
        self.release(SLOT[14], SLOT[15])
        hooks = {}

        def hook(k, g):
            hooks.setdefault(k, []).append(g.l if isinstance(g, Seq) else g)
        a = self.acc_init(0)
        a("v_add_u32 v12, 0x10000, v13")
        hook(-1, a)
        hV = self.poll_check(108, "v19", "0", 128, expect=4)
        hV("v_and_b32 v109, 15, v109")
        hV(f"v_cmp_ne_u32 vcc, {sXCC}, v109")
        hV(f"s_or_b32 {sLOCAL}, vcc_hi, {1 if p['force_safe'] else 0}")
        hV(f"v_mov_b32 v125, {sTAGhi}")
        hV.ext(self.stamp("cv"))
        for k in range(36):
            if k + 25 == p["u_flv"]:
                hook(k, self.flV)
            if k + 25 == p["u_ck"]:
                hook(k, self.ckK)
            if k == p["a_pv"]:
                hook(k, self.poll_issue(108, "v19", "0", 128))
            if k == p["a_cv"]:
                hook(k, hV)
            if k == p["a_bar"]:
                assert self.cnt["wo"] == 16
                hook(k, Seq()("s_barrier", need=("st16", "st17", "st18", "st19")))
            if k == p["a_pub"]:
                hook(k, self.publish("ost0", sOF, F_O).ext(self.stamp("pubA")))
            if k == p["a_po"]:
                hook(k, self.poll_issue(22, "v16", sLB, F_O))
            if k == p["a_co"]:
                hook(k, self.poll_check(22, "v16", sLB, F_O).ext(self.stamp("co")))
            if k == p["a_bar"] + 1:
                self.release(8, 9)
            vm, ds = self.events(("a", k))
            assert self.cnt["k"] == 0 or k + 25 >= p["u_ck"]
            assert self.cnt["v"] == 0 or k >= p["a_cv"] > p["a_pv"] >= max(p["u_ck"], p["u_flv"]) - 25
            assert self.cnt["od"] == 0 or k >= p["a_co"] > p["a_bar"] > 6
            for g in vm:
                hook(k, g)
            if ds:
                hook(k, flat(ds))
        assert self.cnt["k"] == 8 and self.cnt["v"] == 4 and self.cnt["wo"] == 16
        s.ext(self.run_tiles(hooks))
        s.ext(flat(self.take("od", min(2, 8 - self.cnt["od"]))))
        s.ext(self.finish_o(1))
        s.ext(self.stamp("attB"))
        return s

    RING, NR = 64, 13

    def ring(self, i):
        return self.RING + 4 * (i % self.NR)

    def h_order(self):
        x = self.p["x"]
        steps = [(k, (0,)) for k in range(x)] + [(k, (0, 1)) for k in range(x, 32)] + [(k, (1,)) for k in range(x)]
        return steps, [(k, q) for k, qs in steps for q in qs]

    def h_load(self, i):
        k, q = self.h_order()[1][i]
        a = Seq()
        if k % 4 == 0:
            if q == 1 and k >= self.p["x"]:
                a(f"s_add_u32 {sH[1]}, {sH[0]}, 32768")
            else:
                a(f"s_add_u32 {sH[q]}, {sC3}, {(k >> 2)*4096}")
                a(f"s_and_b32 {sH[q]}, {sH[q]}, 0x7000")
                if q == 1 and k == 0:
                    a(f"s_add_u32 {sHS}, {sHS}, 32768")
                a(f"s_add_u32 {sH[q]}, {sH[q]}, {sHS}")
        a(f"buffer_load_dwordx4 {vr(self.ring(i),4)}, {vL16}, {SWS}, {sH[q]} offen{off(1024*(k%4))} {self.p['ld_local']}")
        return a.l

    def wo_phase(self):
        p = self.p
        s = Seq()
        F, NB = 128, 16
        self.wd_max = 12
        rest = self.take("od", 8 - self.cnt["od"])
        d = Seq()
        for k in range(16):
            o = SLOT[16 + (k >> 2)] * 16384 + 4096 * (k & 3)
            b = "v12" if o >= 0x10000 else "v13"
            d(f"ds_read_b64_tr_b16 {ar(AWO+4*k,2)}, {b} offset:{o & 0xFFFF}", tok="wo")
            d(f"ds_read_b64_tr_b16 {ar(AWO+4*k+2,2)}, {b} offset:{(o & 0xFFFF)+512}", tok="wo")
        vm, ds = self.events("woa")
        s.ext(flat(merge(groups(d, 1) + ds, rest + vm)))
        self.nh = 0
        for q in range(2):
            AC = self.AC_[q]
            base, off0 = ("v211", 0) if q == 0 else ("v210", OB_SLOT * 16384)
            if q == 1:
                s.ext(self.poll_check(22, "v16", sLB, F_O + 256))
                s.ext(self.stamp("cob"))
                self.release(*SLOT[16:20])
                vm, ds = self.events("wob")
                idle = groups(self.acc_init(1), 1) + groups(self.p3_setup(), 1) + ds
                od = self.take("od", 8)
                s.ext(flat(od[:3]))
                s.ext(self.publish("hst0", sOF, F_H))
                s.ext(flat(merge(idle, od[3:] + vm)))

            def rd(i):
                return Seq()(f"ds_read_b128 {vr(F+4*(i % NB),4)}, {base} offset:{off0 + (i>>1)*2048 + (i&1)*256}").l

            ex = {}
            if q == 0:
                ex[p["w_pub"]] = self.publish("ost1", sOF, F_O + 256)
                ex[31] = self.poll_issue(22, "v16", sLB, F_O + 256)
            else:
                ex[p["w_poll"]] = self.poll_issue(22, "v19", sLW, F_H)
                ex[p["w_chk"]] = self.poll_check(22, "v19", sLW, F_H).ext(self.stamp("chA"))
                for i in range(p["w_chk"] + 1, 32, 2):
                    ex[i] = Seq().ext(self.h_load(self.nh))
                    self.nh += 1
            if -1 in ex:
                s.ext(ex[-1])
            s("s_barrier", need=(f"od{q}0",))
            s.ext(self.stamp(f"w{q}b"))
            for i in range(8):
                s.ext(rd(i))
            for i in range(32):
                s(mf16(AC + 4 * (i & 1), ar(AWO + 4 * (i >> 1), 4), vr(F + 4 * (i % NB), 4)))
                if i == 8:
                    s("s_barrier", need=(f"od{q}1", "wo"))
                if i + 8 < 32:
                    s.ext(rd(i + 8))
                if i in ex:
                    s.ext(ex[i])
            hp = vXR + 4 * q
            s(f"s_add_u32 {sT0}, {sOST}, {HBUF - OBUF + q*32768}")
            for i in range(4):
                s(f"v_cvt_pk_bf16_f32 {vr(hp+i)}, {vr(AC+2*i)}, {vr(AC+2*i+1)}")
            s(f"v_permlane16_swap_b32 {vr(hp)}, {vr(hp+2)}")
            s(f"v_permlane16_swap_b32 {vr(hp+1)}, {vr(hp+3)}")
            s(f"buffer_store_dwordx4 {vr(hp,4)}, {vL16}, {SWS}, {sT0} offen {p['st_local']}", tok=f"hst{q}")
            s.ext(self.stamp(f"wo{q}"))
        return s

    def p3_setup(self):
        s = Seq()
        s("v_mov_b32 v10, v214")
        s("v_xor_b32 v11, 0x800, v214")
        s("v_xor_b32 v12, 64, v214")
        s("v_xor_b32 v13, 0x840, v214")
        s("v_and_b32 v19, 31, v0")
        s("v_lshlrev_b32 v5, 10, v19")
        s("v_lshrrev_b32 v4, 5, v0")
        s("v_lshl_add_u32 v5, v4, 4, v5")
        s("v_lshlrev_b32 v19, 3, v19")
        s("v_min_u32 v16, 6, v0")
        s(f"s_mul_i32 {sT0}, {sW}, 7")
        s(f"v_add_lshl_u32 v16, {sT0}, v16, 3")
        return s

    def slow_softmax(self, q, back):
        Q, P = self.Q_, 248
        S, C, O = 216, 232, self.O_[q]
        lab = self.lab("slow")
        t = Seq()
        t(f"{lab}:")
        t("s_nop 15")
        tiles = list(range(q, q + 9))

        def guarded(kt, body):
            if kt >= 8:
                t.ext(body)
                return
            skip = self.lab("skip")
            t(f"s_cmp_eq_u32 {sONE[kt >> 1]}, 0")
            t(f"s_cbranch_scc1 {skip}")
            t.ext(body)
            t("s_nop 15")
            t(f"{skip}:")

        def bias(kt, base):
            b = Seq()
            for i in range(16):
                if kt == q:
                    b(f"v_add_f32 {vr(C+i)}, {vr(self.MF_+i)}, {base}")
                elif kt == q + 8:
                    b(f"v_add_f32 {vr(C+i)}, {vr(self.MD_+i)}, {base}")
                else:
                    b(f"v_mov_b32 {vr(C+i)}, {base}")
            return b
        t("v_mov_b32 v208, 0xff7fffff")
        for kt in tiles:
            b = bias(kt, vZ)
            b(mf32(S, ar(AK_ + 4 * kt, 4), vr(Q + 4 * q, 4), vr(C, 16)))
            for i in range(0, 16, 2):
                b(f"v_max3_f32 v208, {vr(S+i)}, {vr(S+i+1)}, v208")
            guarded(kt, b)
        t("v_mov_b32 v209, v208")
        t("v_permlane32_swap_b32 v208, v209")
        t("v_max_f32 v208, v208, v209")
        t("v_sub_f32 v208, 0, v208")
        for i in range(16):
            t(f"v_mov_b32 {vr(O+i)}, 0")
        for kt in tiles:
            b = bias(kt, "v208")
            b(mf32(S, ar(AK_ + 4 * kt, 4), vr(Q + 4 * q, 4), vr(C, 16)))
            for i in range(16):
                b(f"v_exp_f32 {vr(S+i)}, {vr(S+i)}")
            for i in range(8):
                b(f"v_cvt_pk_bf16_f32 {vr(P+i)}, {vr(S+2*i)}, {vr(S+2*i+1)}")
            b(mf32(O, ar(AV_ + 8 * kt, 4), vr(P, 4)))
            b(mf32(O, ar(AV_ + 8 * kt + 4, 4), vr(P + 4, 4)))
            guarded(kt, b)
        t("s_nop 15")
        t(f"s_branch {back}")
        self.tail.append(t)
        return lab

    def act_load(self, i):
        q, k = divmod(i, 28)
        a = Seq()
        if k % 4 == 0:
            self.chunk4(a, sH[0], k >> 2)
            if i == 28:
                a(f"s_add_u32 {sAA}, {sAA}, {112*1024}")
            a(f"s_add_u32 {sH[0]}, {sH[0]}, {sAA}")
        a(f"buffer_load_dwordx4 {vr(self.ring(64+i),4)}, {vL16}, {SWS}, {sH[0]} offen{off(1024*(k%4))} {self.p['ld_local']}")
        return a.l

    def stats_load(self, with_mu):
        s = Seq()
        s("v_min_u32 v20, 7, v0")
        s("v_lshlrev_b32 v20, 3, v20")
        s(f"s_lshl_b32 {sT4}, {sG}, 7")
        s(f"s_add_u32 {sT4}, {sT4}, {SFL}")
        s.ext(self.poll_issue(22, "v20", sT4))
        t = self.poll_check(22, "v20", sT4)
        u = Seq()
        if with_mu:
            u(f"buffer_load_dword v126, v19, {SWS}, {sLW} offen offset:{F_S} sc1")
            u(f"buffer_load_dword v127, v19, {SWS}, {sLW} offen offset:{F_S+256} sc1")
        u(f"buffer_load_dword v14, v19, {SWS}, {sLB} offen offset:{F_S+4} sc1")
        u(f"buffer_load_dword v15, v19, {SWS}, {sLB} offen offset:{F_S+260} sc1")
        return s, t, u

    def p3(self):
        p = self.p
        x = p["x"]
        ACC = (128, 192)
        WF, CS = 32, 116
        SEL = vr(120, 4)
        steps, hl = self.h_order()
        s = Seq()
        PF = min(self.NR - 2, x)
        hi_state = [True]

        def rd_w(pos):
            k = steps[pos][0]
            slot = SLOT[20 + (k >> 2)] * 16384
            o = (slot & 0xFFFF) + (k & 3) * 4096
            q = []
            for sg in range(4):
                d = WF + 16 * (pos & 1) + 4 * sg
                q.append(Seq()(f"ds_read_b64_tr_b16 {vr(d,2)}, v{10+sg} offset:{o}").l)
                q.append(Seq()(f"ds_read_b64_tr_b16 {vr(d+2,2)}, v{10+sg} offset:{o+512}").l)
            return q

        def flip(pos):
            hi = SLOT[20 + (steps[pos][0] >> 2)] >= 4
            a = Seq()
            if hi != hi_state[0]:
                for i in range(4):
                    a(f"v_xor_b32 v{10+i}, 0x10000, v{10+i}")
                hi_state[0] = hi
            return groups(a, 1)

        def correct(q, keep):
            e = Seq()
            e.ext(self.split_first(f"v{126+q}", 20, 4))
            e("v_mov_b32 v22, 0")
            e("v_mov_b32 v23, 0")
            if q == 0:
                e("v_mov_b32 v122, 0")
                e("v_mov_b32 v123, 0")
            for sg in range(4):
                e.ext(self.split_second(f"v{116+sg}", 120, 4))
                e(mf32(ACC[q] + 16 * sg, vr(120, 4), vr(20, 4)))
            return e

        def product(q):
            e = Seq()
            A = ACC[q]
            if q:
                e(f"s_add_u32 {sAST}, {sAST}, {112*1024}")
            e(f"s_xor_b32 {sT1}, {sAST}, 2048")
            for ft in range(2):
                g, u = A + 32 * ft, A + 32 * ft + 16
                so = sAST if ft == 0 else sT1
                for i in range(8):
                    e(f"v_mul_f32 {vr(g+2*i)}, {vr(g+2*i)}, {vr(u+2*i)}")
                    e(f"v_mul_f32 {vr(g+2*i+1)}, {vr(g+2*i+1)}, {vr(u+2*i+1)}")
                    e(f"v_cvt_pk_bf16_f32 {vr(g+i)}, {vr(g+2*i)}, {vr(g+2*i+1)}")
                    if i == 3:
                        e(f"buffer_store_dwordx4 {vr(g,4)}, {vL16}, {SWS}, {so} offen {p['st_act']}", tok=f"ast{q}")
                e(f"buffer_store_dwordx4 {vr(g+4,4)}, {vL16}, {SWS}, {so} offen offset:1024 {p['st_act']}", tok=f"ast{q}")
            return e

        assert self.cnt["gu"] >= 4
        s("s_barrier", need="st20")
        self.release(OB_SLOT, OB_SLOT + 1, 8, 9)
        nh = self.nh
        pre = []
        while nh < p["h_first"]:
            pre.append(self.h_load(nh))
            nh += 1
        s.ext(flat(merge(rd_w(0), pre)))
        s.ext(self.stamp("p3s"))
        st_issue, st_check, st_load = self.stats_load(True)
        hi_ = 0
        started = [False, False]
        firstB = x + 1
        LB = p["lead_hb"]
        nst = len(steps)
        self.na = 0
        spread = {}

        def spread_add(first, n, gs):
            per = -(-len(gs) // n)
            for a in range(n):
                spread.setdefault(first + a, []).extend(gs[a * per:(a + 1) * per])
        spread_add(33, p["epa_steps"], groups(correct(0, 0).ext(product(0)), 1))
        spread_add(33 + p["epa_steps"], 2, groups(correct(1, 0), 1))
        self.epB = product(1)
        for pos, (k, qs) in enumerate(steps):
            m = Seq()
            for sg in range(4):
                for n, q in enumerate(qs):
                    m(mf32(ACC[q] + 16 * sg, vr(WF + 16 * (pos & 1) + 4 * sg, 4), vr(self.ring(hi_ + n), 4),
                           None if started[q] else "0"))
                if sg == 0 and pos < 32:
                    m(mf16(CS, SEL, vr(WF + 16 * (pos & 1), 4), None if pos else "0"))
            for q in qs:
                started[q] = True
            hi_ += len(qs)
            fill, paced = [], []
            if pos + 1 < nst:
                kn = steps[pos + 1][0]
                if pos + 1 < 32 and kn % 4 == 0:
                    assert self.cnt["gu"] >= kn + 4, kn
                    fill.append(Seq()("s_barrier", need=f"st{20 + (kn >> 2)}").l)
                fill += rd_w(pos + 1)
            if pos + 2 < nst:
                fill += flip(pos + 2)
            if pos == p["h_pub"]:
                fill.append(self.publish("hst1", sOF, F_H + 256).l)
            if pos == x - LB - 3:
                paced.append(self.poll_issue(22, "v19", sLW, F_H + 256).l)
            if pos == x - LB - 1:
                fill.append(self.poll_check(22, "v19", sLW, F_H + 256).ext(self.stamp("chB")).l)
            lim = min(len(hl), hi_ + PF, nh + len(qs) + 1)
            if pos < x - LB:
                lim = min(lim, firstB)
            hs = []
            while nh < lim:
                hs.append(self.h_load(nh))
                nh += 1
            if pos == p["a_poll"]:
                paced.append(self.poll_issue(22, "v16", sLB, F_A).l)
            if pos == p["a_chk"]:
                fill.append(self.poll_check(22, "v16", sLB, F_A).l)
            if pos > p["a_chk"]:
                assert nh == len(hl)
                lim = min(hi_ + PF - 64, self.na + 2)
                while self.na < lim:
                    hs.append(self.act_load(self.na))
                    self.na += 1
            for c in range(x // 4 + 1, 8):
                if pos == min(4 * c + 8, 33):
                    self.release(SLOT[20 + c])
            vm, ds = self.events(("p3", pos))
            paced += merge(hs, vm) if hs else vm
            fill += ds
            if pos == 25:
                fill.append(st_issue.l)
            if pos == 28:
                fill.append(st_check.l)
            if pos == 29:
                assert self.cnt["gu"] == 32 and self.seen["gu"] == 32
                paced += groups(st_load, 2)
            if pos == 31:
                t = Seq()
                t(f"s_lshl_b32 {sT0}, {sW}, 8")
                t(f"s_add_u32 {sT0}, {sT0}, {SLOT[20 + x//4] * 16384}")
                t(f"v_lshl_add_u32 v20, v0, 2, {sT0}")
                t(f"ds_write_b32 v20, v{CS}", tok="csw")
                for sg in (1, 2, 3):
                    t(f"v_xor_b32 v{20+sg}, {256*sg}, v20")
                fill += groups(t, 1)
            if pos == 32:
                t = Seq()
                t("s_barrier", need="csw")
                for sg in (1, 2, 3):
                    t(f"ds_read_b32 v{CS+sg}, v{20+sg}")
                fill = groups(t, 1) + fill
            fill += spread.get(pos, [])
            if pos == p["a_flag"]:
                fill.append(self.publish("ast0", sAF, F_A).l)
            s.ext(weave(m, fill, paced))
            if pos == x - 1:
                s.ext(self.stamp("p3a"))
            if pos == 31:
                s.ext(self.stamp("p3b"))
        assert p["a_poll"] >= 35 + p["epa_steps"]
        s.ext(self.stamp("p3c"))
        return s

    def spare(self):
        s = Seq()
        F = 128
        s.ext(self.publish("hst1", sOF, F_H + 256))
        s(f"s_lshl_b32 {sT0}, {sG}, 2")
        s(f"s_add_u32 {sT0}, {sT0}, {sR}")
        s(f"s_sub_u32 {sT0}, {sT0}, 28")
        s(f"s_and_b32 {sT1}, {sW}, 1")
        s(f"s_lshl_b32 {sLW}, {sT0}, 3")
        s(f"s_add_u32 {sLW}, {sLW}, {sT1}")
        s(f"s_lshl_b32 {sLW}, {sLW}, 8")
        s(f"s_add_u32 {sLW}, {sLW}, {LFL}")
        s(f"s_lshl_b32 {sT0}, {sT0}, 1")
        s(f"s_add_u32 {sT0}, {sT0}, {sT1}")
        s(f"s_lshl_b32 {sHS}, {sT0}, 15")
        s(f"s_lshr_b32 {sT1}, {sW}, 1")
        s(f"s_lshl_b32 {sT1}, {sT1}, 14")
        s(f"s_add_u32 {sHS}, {sHS}, {sT1}")
        s(f"s_add_u32 {sHS}, {sHS}, {HBUF}")
        s(f"s_and_b32 {sT0}, {sT0}, 7")
        s(f"s_lshl_b32 {sT0}, {sT0}, 3")
        s(f"s_lshl_b32 {sAF}, {sG}, 7")
        s(f"s_add_u32 {sAF}, {sAF}, {sT0}")
        s(f"s_add_u32 {sAF}, {sAF}, {SFL}")
        st = Seq()
        st.ext(self.poll_issue(22, "v19", sLW, F_H))
        st.ext(self.poll_check(22, "v19", sLW, F_H))
        for i in range(16):
            if i % 4 == 0:
                st(f"s_add_u32 {sT2}, {sHS}, {i*1024}")
            st(f"buffer_load_dwordx4 {vr(F+4*i,4)}, {vL16}, {SWS}, {sT2} offen{off(1024*(i%4))} sc1")
        st("v_mov_b32 v112, 0")
        st("v_mov_b32 v113, 0")
        for i in range(16):
            st(mf16(116, vr(120, 4), vr(F + 4 * i, 4), None if i else "0"))
        for i in range(64):
            st(f"v_dot2c_f32_bf16 v{112 + (i & 1)}, {vr(F+i)}, {vr(F+i)}")
        st("v_add_f32 v112, v112, v113")
        st("v_mov_b32 v113, v112")
        st("v_permlane32_swap_b32 v112, v113")
        st("v_add_f32 v117, v112, v113")
        st(f"s_lshl_b32 {sT0}, {sW}, 9")
        st(f"s_add_u32 {sT0}, {sT0}, {SLOT[20]*16384}")
        st(f"v_lshl_add_u32 v20, v0, 3, {sT0}")
        st("ds_write_b64 v20, v[116:117]", tok="spw")
        st("s_barrier", need="spw")
        st("v_xor_b32 v20, 1024, v20")
        st("ds_read_b64 v[112:113], v20")
        st("v_add_f32 v116, v116, v112")
        st("v_add_f32 v117, v117, v113")
        st(f"v_mul_f32 v116, {1.0/512!r}, v116")
        st(f"v_mul_f32 v117, {1.0/512!r}, v117")
        st("v_fma_f32 v117, -v116, v116, v117")
        st("v_max_f32 v117, 0, v117")
        st("v_add_f32 v117, 0x3727c5ac, v117")
        st("v_rcp_f32 v117, v117")
        st("v_mul_f32 v116, -0.5, v116")
        st(f"buffer_store_dwordx2 v[116:117], v19, {SWS}, {sLW} offen offset:{F_S} {self.p['st_local']}", tok="sst")
        st.ext(self.publish("sst", sAF))
        self.cnt, self.wd_hi, self.lds = self.saved
        assert self.cnt["wd"] % 8 == 0
        s("s_barrier", need="st20")
        self.release(OB_SLOT, OB_SLOT + 1, 8, 9)
        h0 = self.cnt["wd"] // 4
        self.wd_slots = self.wd_slots[:h0] + [(8, 9, OB_SLOT, OB_SLOT + 1)[h & 3] for h in range(h0, 14)]
        self.seen = dict(self.cnt)
        s.ext(flat(self.take("dr", 8 * h0 - self.cnt["dr"])))
        s("v_lshrrev_b32 v32, 2, v0")
        s("v_and_b32 v33, 3, v0")
        s("v_lshlrev_b32 v33, 7, v33")
        s("v_lshl_add_u32 v32, v32, 10, v33")
        s(f"s_sub_u32 {sT0}, {sR}, 28")
        s(f"s_lshl_b32 {sT0}, {sT0}, 14")
        s(f"v_add_u32 v32, {sT0}, v32")
        for h in range(h0, 17):
            if h == h0 + 2 * self.p["sp_first"]:
                s.ext(st)
            self.seen = dict(self.cnt)
            if h < 14:
                pcs = self.take("wd", 4)
                if h % 2 == 0:
                    t = Seq()(f"s_and_b32 {sT1}, {sWS_}, 0xfffffc00")
                    t(f"buffer_load_dword v{34 + h//2}, v32, {SWD}, {sT1} offen")
                    pcs[0] = pcs[0][:-1] + t.l + pcs[0][-1:]
                s.ext(flat(pcs))
            if h - 3 >= h0:
                s.ext(flat(self.take("dr", 8)))
        a, b, c = self.stats_load(False)
        s.ext(a).ext(b).ext(c)
        s("s_waitcnt vmcnt(0) lgkmcnt(0)")
        return s

    def p4(self, regular):
        p = self.p
        A = 128
        s = Seq()
        PF = self.NR - 1
        red = Seq()
        red(f"v_add_u32 v10, {sM0D}, {vL16}")
        for u in (1, 2, 3):
            red(f"v_xor_b32 v{10+u}, {8192*u}, v10")
        red(f"s_add_u32 {sT3}, {sOUTO}, 32768")
        nl = self.na if regular else 0
        epb = groups(self.epB, 1) if regular else []
        if not regular or p["a_chk"] >= 32 + p["x"]:
            k2 = p["epb_chk"]
            if not regular or p["a_poll"] >= 32 + p["x"]:
                s.ext(self.poll_issue(22, "v16", sLB, F_A))
            s.ext(flat(epb[:k2]))
            s.ext(self.poll_check(22, "v16", sLB, F_A))
            lds = []
            while nl < 8:
                lds.append(self.act_load(nl))
                nl += 1
            s.ext(flat(merge(epb[k2:], lds) if epb[k2:] else lds))
            epb = []
        s.ext(self.stamp("p4s") if regular else Seq())

        def send(q, us):
            e = Seq()
            for u in us:
                for hf in range(2):
                    e(f"ds_write_b128 v{10+u}, {vr(A+32*q+8*u+4*hf,4)} offset:{32768*q + 2048*u + 1024*hf}", tok=f"red{q}")
            return e

        def unpack(q, T):
            e = Seq()
            for i in range(8):
                hp = vr(vXR + 4 * q + (i >> 1))
                e(f"v_and_b32 {vr(T+i)}, 0xffff0000, {hp}" if i & 1 else f"v_lshlrev_b32 {vr(T+i)}, 16, {hp}")
            return e

        def recv(q, T, H):
            e = Seq()
            e("s_barrier", need=f"red{q}")
            for hf in range(2):
                for u in (1, 2, 3):
                    e(f"ds_read_b128 {vr(T+8*(u-1)+4*hf,4)}, v10 offset:{32768*q + 2048*u + 1024*hf}")
            d = A + 32 * q
            for hf in range(2):
                r = range(4 * hf, 4 * hf + 4)
                for u in range(3):
                    for i in r:
                        e(f"v_add_f32 {vr(d+i)}, {vr(d+i)}, {vr(T+8*u+i)}")
                for i in r:
                    e(f"v_fma_f32 {vr(d+i)}, {vr(d+i)}, v{14+q}, {vr(H+i)}")
                for i in (2 * hf, 2 * hf + 1):
                    e(f"v_cvt_pk_bf16_f32 {vr(d+i)}, {vr(d+2*i)}, {vr(d+2*i+1)}")
            e(f"buffer_store_dwordx4 {vr(d,4)}, v5, {SOUT}, {sT3 if q else sOUTO} offen {p['st_out']}")
            return e

        extra = {}
        per = -(-len(epb) // 7)
        for i in range(7):
            extra[i] = epb[i * per:(i + 1) * per]
        if regular:
            extra.setdefault(p["b_pub"], []).append(self.publish("ast1", sAF, F_A + 256).l)
        extra.setdefault(24, []).extend(groups(red, 1))
        extra.setdefault(25, []).extend(groups(unpack(0, 32), 1))
        extra.setdefault(26, []).extend(groups(unpack(1, 40), 1))
        extra.setdefault(28 + 1, []).append(Seq()("s_barrier").l)
        for i, g in enumerate(groups(send(0, (1, 2, 3)), 1)):
            extra.setdefault(28 + 2 + i, []).append(g)
        for i, g in enumerate(groups(recv(0, 192, 32), 5)):
            extra.setdefault(28 + 9 + i, []).extend(groups(g, 1))
        if regular:
            extra.setdefault(28 + 19, []).append(self.finale().l)
        LA, TL = p["lead_ab"], p["tail"]

        def mm(i, ct):
            q, k = divmod(i, 28)
            return mf32(A + 32 * q + 16 * ct, ar(WD_HOME[k >> 1] + 8 * (k & 1) + 4 * ct, 4), vr(self.ring(64 + i), 4), None if k else "0")
        for i in range(56 - TL):
            q, k = divmod(i, 28)
            assert self.cnt["dr"] >= 4 * (k + 1), k
            m = Seq()(mm(i, 0))(mm(i, 1))
            fill, paced = [], []
            if i == 28 - LA - 5:
                paced.append(self.poll_issue(22, "v16", sLB, F_A + 256).l)
            if i == 28 - LA - 1:
                fill.append(self.poll_check(22, "v16", sLB, F_A + 256).l)
            lim = min(56, i + 1 + PF, nl + 2)
            if i < 28 - LA:
                lim = min(lim, 28)
            while nl < lim:
                paced.append(self.act_load(nl))
                nl += 1
            if regular:
                vm, ds = self.events(("p4", i))
                paced += vm
                fill += ds
            fill += extra.get(i, [])
            s.ext(weave(m, fill, paced))
            if i == 27 and regular:
                s.ext(self.stamp("p4a"))
        assert nl == 56
        m = Seq()
        for i in range(56 - TL, 56):
            m(mm(i, 1))
        s.ext(m)
        m = Seq()
        for i in range(56 - TL, 56):
            m(mm(i, 0))
        if TL >= 6:
            s.ext(weave(m, [], groups(send(1, (2, 3)), 1), start=2))
        else:
            s.ext(m).ext(send(1, (2, 3)))
        if regular:
            s.ext(self.stamp("p4b"))
        s.ext(send(1, (1,)))
        s.ext(recv(1, 192, 40))
        return s

    def finale(self):
        go, done, skip = self.lab("fin"), self.lab("fin"), self.lab("fin")
        s = Seq()
        s(f"s_or_b32 {sT0}, {sR}, {sW}")
        s(f"s_cbranch_scc0 {go}")
        s(f"{done}:")
        t = Seq()
        t(f"{go}:")
        t(f"s_cmp_eq_u32 {sG}, 0")
        t(f"s_cbranch_scc1 {skip}")
        t(f"s_lshl_b32 {sT0}, {sG}, 7")
        t(f"s_add_u32 {sT0}, {sT0}, {EPOCH - 128}")
        t(f"v_mov_b32 v20, {sPTAGlo}")
        t(f"v_mov_b32 v21, {sPTAGhi}")
        t(f"buffer_store_dwordx2 v[20:21], {vZ}, {SWS}, {sT0} offen sc1")
        t(f"{skip}:")
        t(f"s_cmp_lg_u32 {sG}, 7")
        t(f"s_cbranch_scc1 {done}")
        t(f"s_mov_b32 {sT0}, {EPOCH + 7*128}")
        t(f"buffer_store_dwordx2 v[124:125], {vZ}, {SWS}, {sT0} offen sc1")
        t(f"s_branch {done}")
        self.tail.append(t)
        return s

    def dump_stamps(self):
        s = Seq()
        if not self.p["stamps"]:
            return s
        s("s_waitcnt vmcnt(0)")
        s.ext(self.stamp("end"))
        s("s_memrealtime s[94:95]")
        s("s_waitcnt lgkmcnt(0)")
        s("v_writelane_b32 v3, s94, 62")
        s("v_writelane_b32 v3, s98, 63")
        s("v_writelane_b32 v3, s100, 61")
        s(f"s_lshl_b32 {sT0}, s2, 2")
        s(f"s_add_u32 {sT0}, {sT0}, {sW}")
        s(f"s_lshl_b32 {sT0}, {sT0}, 8")
        s(f"s_add_u32 {sT0}, {sT0}, {STAMP}")
        s("v_lshlrev_b32 v20, 2, v0")
        s(f"buffer_store_dword v3, v20, {SWS}, {sT0} offen")
        if self.p.get("enc") is not None:
            skip, loop = self.lab("enc"), self.lab("enc")
            s(f"s_lshl_b32 {sT0}, s2, 2")
            s(f"s_add_u32 {sT0}, {sT0}, {sW}")
            s(f"s_cmp_lg_u32 {sT0}, {self.p.get('encw', 332)}")
            s(f"s_cbranch_scc1 {skip}")
            nm = self.p["enc"]
            s(f"v_readlane_b32 {sT1}, v3, {63 if nm == 'zero' else 30 + self.stamp_names.index(nm)}")
            s(f"{loop}:")
            s("s_memrealtime s[94:95]")
            s("s_waitcnt lgkmcnt(0)")
            s(f"s_sub_u32 {sT2}, s94, {sT1}")
            s(f"s_cmp_lt_u32 {sT2}, 6000")
            s(f"s_cbranch_scc1 {loop}")
            s(f"{skip}:")
        if self.p.get("dbg") is not None:
            skip = self.lab("dbg")
            s(f"s_lshl_b32 {sT0}, s2, 2")
            s(f"s_add_u32 {sT0}, {sT0}, {sW}")
            s(f"s_cmp_lg_u32 {sT0}, {self.p['dbg']}")
            s(f"s_cbranch_scc1 {skip}")
            s("s_load_dwordx2 s[4:5], s[0:1], 64")
            s("s_mov_b32 s6, 64")
            s("s_mov_b32 s7, 0x20000")
            s("v_subrev_u32 v3, s98, v3")
            s(f"v_subrev_u32 v20, {4*(30 + self.p.get('dbg0', 0))}, v20")
            s("s_waitcnt lgkmcnt(0)")
            s("buffer_store_dword v3, v20, s[4:7], 0 offen")
            s(f"{skip}:")
        return s

    def default_bg(self):
        bg = {}

        def put(ph, rng, kind, n=1):
            for k in rng:
                bg.setdefault((ph, k) if k is not None else ph, []).append((kind, n))
        put("u", self.p.get("tw_at", (8, 11, 14)), "tw")
        put("u", range(18, 23), "wo", 2)
        put("u", (23,), "k", 2)
        put("u", (24,), "k", 4)
        put("a", (0, 1), "k")
        put("a", (2, 4, 5, 6), "wo")
        put("a", range(7, 11), "v")
        ts = self.p.get("ts_at", ("a", 11))
        put(ts[0], (ts[1],), "ts")
        put("a", (12, 13), "wo")
        put("a", range(14, 22), "gu")
        put("a", (23, 24, 25, 26), "wd")
        put("a", (33, 34, 35), "od", 2)
        put("wob", (None,), "gu", 4)
        put("wob", (None,), "dr", 8)
        put("p3", range(0, 20), "gu")
        put("p3", range(12, 20), "wd")
        seq = [(19, "dr"), (20, "wd"), (22, "dr"), (23, "wd"), (25, "dr"), (26, "wd"), (28, "dr"), (29, "wd"), (31, "dr")]
        for pos, kind in seq:
            if kind == "dr":
                put("p3", (pos,), "dr", 8)
            else:
                put("p3", (pos, pos + 1), "wd", 2)
        put("p3", range(31, 47), "wd")
        put("p3", range(40, 48), "dr", 2)
        put("p4", range(0, 8), "wd")
        put("p4", range(7, 13), "dr", 4)
        put("p4", range(9, 13), "wd")
        put("p4", range(15, 19), "dr", 4)
        put("p4", range(22, 24), "dr", 4)
        return bg

    def bg_from(self, spec):
        bg = {}
        for ph, rng, kind, n in spec:
            for k in rng:
                bg.setdefault((ph, k) if k is not None else ph, []).append((kind, n))
        return bg

    def build(self):
        p = self.p
        if "spec" in p:
            p["bg"] = self.bg_from(p["spec"])
        for k, v in dict(a_bar=31, h_first=8, h_pub=2, a_chk=99, tail=8).items():
            p.setdefault(k, v)
        p.setdefault("bg", self.default_bg())
        self.wd_slots = list(p.get("wd_slots") or [7, 8, 9, 8, 9, 8, 9, 1, 2, 3, 8, 9, 1, 2])
        self.lds = {a: (None if a in (6, 7) else ("p1", a)) for a in range(10)}
        self.cnt = dict.fromkeys(("wo", "gu", "wd", "dr", "k", "v", "od", "tw", "ts"), 0)
        self.wd_hi = 0
        self.cur = {}
        head = Seq()
        if p["stamps"]:
            head("s_memrealtime s[98:99]")
            head("s_memtime s[100:101]")
        head.ext(self.prologue())
        head.ext(self.p1())
        head.ext(self.attention())
        head.ext(self.wo_phase())
        self.wd_max = 14
        head(f"s_cmp_ge_u32 {sR}, 28")
        head("s_cbranch_scc1 L_spare")
        self.saved = (dict(self.cnt), self.wd_hi, dict(self.lds))
        ab = p.get("abh", "")
        st0 = State()
        if ab:
            out = []
            for i in head.l:
                if i.kind == "dma" and "l" in ab and sRS in i.text:
                    i = Ins(i.text.replace(sRS + " offen", "0 offen"), tok=i.tok)
                if i.kind == "dma" and "L" in ab and sRS in i.text:
                    st0.done.add(i.tok)
                    continue
                if "b" in ab and i.kind == "barrier":
                    i = Ins("s_nop 0", need=i.need)
                if "r" in ab and i.kind == "dsr" and i.tok is None:
                    continue
                if "w" in ab and i.kind == "dsw":
                    st0.done.add(i.tok)
                    continue
                out.append(i)
            head.l = out
        o1, st = finalize(head.l, st0)
        st_sp = st.copy()
        main = Seq().ext(self.p3())
        main.ext(self.p4(True))
        assert self.cnt["wd"] == 56 and self.cnt["dr"] == 112, self.cnt
        main("L_fin:")
        main.ext(self.dump_stamps())
        main("L_end:")
        main("s_endpgm")
        ab = p.get("abl", "")
        if ab:
            out = []
            for i in main.l:
                if i.kind == "dma" and (("g" in ab and sGS in i.text) or ("w" in ab and sWS_ in i.text)):
                    i = Ins(i.text.replace(sGS + " offen", "0 offen").replace(sWS_ + " offen", "0 offen"), tok=i.tok)
                if i.kind == "dma" and (("G" in ab and sGS in i.text) or ("W" in ab and sWS_ in i.text)):
                    st.done.add(i.tok)
                    continue
                if "b" in ab and i.kind == "barrier":
                    i = Ins("s_nop 0", need=i.need)
                out.append(i)
            main.l = out
        o2, st2 = finalize(main.l, st)
        self.marks = st2.marks + [("end", st2.clk.t)]
        sp = Seq()("L_spare:")
        sp.ext(self.spare())
        sp.ext(self.p4(False))
        sp("s_branch L_fin")
        o3, _ = finalize(sp.l, st_sp)
        text = render(o1) + render(o2) + render(o3) + "L_hot_end:\n"
        for t in self.tail:
            o, _ = finalize(t.l)
            text += render(o)
        text += "L_abort:\n    s_endpgm\n"
        hdr = open(f"cdna_kernels/{NAME}.s.ref").read().split("; Override launch")[0]
        out = hdr + "; @launch grid=(256,1,1) block=(256,1,1) lds=163840\n"
        out += '.amdgcn_target "amdgcn-amd-amdhsa--gfx950"\n.text\n'
        out += f".globl {NAME}_kernel\n.p2align 8\n.type {NAME}_kernel,@function\n{NAME}_kernel:\n"
        out += text.replace("CODE_BYTES", f"L_hot_end-{NAME}_kernel")
        out += f""".section .rodata,"a"
.p2align 6
.amdhsa_kernel {NAME}_kernel
  .amdhsa_next_free_vgpr 512
  .amdhsa_next_free_sgpr 102
  .amdhsa_accum_offset 256
  .amdhsa_group_segment_fixed_size 0
  .amdhsa_kernarg_size 80
  .amdhsa_user_sgpr_count 2
  .amdhsa_user_sgpr_kernarg_segment_ptr 1
  .amdhsa_system_sgpr_workgroup_id_x 1
.end_amdhsa_kernel
"""
        return out


def generate(outp, **kw):
    g = Gen(**kw)
    txt = g.build()
    if g.p["stamps"]:
        txt = txt.replace("; @launch", "; stamps: " + ",".join(g.stamp_names) + "\n; model: " + ",".join(f"{n}={t}" for n, t in g.marks) + "\n; @launch", 1)
    open(outp, "w").write(txt)
    prev, est = 0, []
    for n, t in g.marks:
        est.append(f"{n}:{t-prev}")
        prev = t
    print("wrote", outp, len(txt), "bytes; issue-model cycles", " ".join(est), "total", prev)


if __name__ == "__main__":
    import ast
    kw = {}
    outp = f"cdna_kernels/{NAME}.s"
    for a in sys.argv[1:]:
        k, v = a.split("=", 1)
        if k == "out":
            outp = v
            continue
        try:
            kw[k] = ast.literal_eval(v)
        except Exception:
            kw[k] = v
    generate(outp, **kw)
```

```python
from gen import *
R = range
N = (None,)
LITE = ("exch", "p3s", "p3c", "end")
def s16(gu_early=(("a", R(11, 15)), ("a", (17, 19, 21, 23)), ("a", (25, 28, 31, 35))), ck=24, cv=9, late="a", front=None, **kw):
    sp = [("u", (1,), "ts", 1)]
    if front is not None:
        sp += front
    elif ck <= 22:
        sp += [("u", R(18, ck + 1), "wo", 2), ("u", R(ck + 1, 24), "k", 3), ("u", (24,), "k", 8 - 3 * (23 - ck)), ("a", R(0, 16 - 2 * (ck - 17)), "wo", 1)]
    elif ck <= 24:
        sp += [("u", R(18, 24), "wo", 2), ("u", (24,), "k", 4), ("a", (0, 1), "k", 2), ("a", (2, 3, 4, 5), "wo", 1)]
    sp += [("a", (cv, cv + 1), "v", 2), ("a", (33, 34, 35), "od", 2)]
    for ph, rng in gu_early:
        sp.append((ph, rng, "gu", 1))
    n = sum(len(r) for _, r in gu_early)
    pos = [0, 1, 3, 5, 6, 8, 9, 11, 13, 14] + list(R(16, 32))
    sp.append(("p3", pos[:32 - n], "gu", 1))
    d = dict(x=16, lead_hb=5, epa_steps=4, a_flag=43, a_poll=46, pre1=260, sp_first=1,
             u_flk=17, u_pk=21, u_ck=ck, u_flv=24, a_pv=cv - 5, a_cv=cv, lag=4, h_pub=4, b_pub=10)
    if late == "a":
        sp += [("p3", R(16, 24), "wd", 1), ("p3", (23,), "dr", 8), ("p3", R(24, 28), "wd", 1), ("p3", (27,), "dr", 8),
               ("p3", R(28, 32), "wd", 2), ("p3", (31,), "dr", 8),
               ("p3", R(32, 36), "wd", 2), ("p3", R(36, 40), "wd", 1), ("p3", R(40, 48), "dr", 3), ("p3", R(44, 48), "wd", 1),
               ("p4", R(0, 20), "wd", 1), ("p4", R(0, 6), "dr", 4), ("p4", R(10, 12), "dr", 4), ("p4", R(14, 16), "dr", 4),
               ("p4", R(18, 20), "dr", 4), ("p4", R(21, 23), "dr", 4), ("p4", R(24, 26), "dr", 4)]
        d["wd_slots"] = [8, 9, 8, 9, 5, 8, 0, 1, 9, 5, 8, 0, 1, 9]
    elif late == "b":
        sp += [("p3", R(16, 24), "wd", 1), ("p3", (23,), "dr", 8), ("p3", R(24, 28), "wd", 1), ("p3", (27,), "dr", 8),
               ("p3", R(28, 32), "wd", 2), ("p3", (31,), "dr", 8),
               ("p3", R(32, 38), "wd", 2), ("p3", R(36, 48), "dr", 4), ("p3", R(39, 47), "wd", 2),
               ("p4", R(0, 8), "wd", 1), ("p4", R(4, 10), "dr", 4), ("p4", R(14, 18), "dr", 4)]
        d["wd_slots"] = [8, 9, 8, 9, 5, 8, 0, 1, 9, 5, 8, 0, 1, 9]
    d["spec"] = sp
    d.update(kw)
    return d
if __name__ == "__main__":
    V = {
     "a": s16(),
     "b": s16(late="b"),
     "c": s16(late="b", ck=22, u_flk=15, u_pk=21, u_flv=22, cv=7, a_pv=1),
     "d": s16(late="b", ck=22, u_flk=15, u_pk=21, u_flv=22, cv=7, a_pv=1, gu_early=(("a", (9, 9, 10, 10)), ("a", (24, 25, 26, 28)), ("woa", (None,) * 4))),
     "e": s16(late="b", gu_early=(("a", (11, 11, 12, 12)), ("a", (24, 25, 26, 28)), ("woa", (None,) * 4))),
     "f": s16(late="b", a_pub=29, a_po=31, a_co=33),
     "g": s16(late="b", w_pub=6),
     "h": s16(late="b", lead_ab=4, b_pub=8),
    }
    for n, d in V.items():
        generate(f"k_{n}.s", stamps=LITE, **d)
```

```python
from sched import *
best = s16(late="b", ck=22, u_flk=15, u_pk=21, u_flv=22, cv=7, a_pv=1, gu_early=(("a", (9, 9, 10, 10)), ("a", (24, 25, 26, 28)), ("woa", (None,) * 4)))
if __name__ == "__main__":
    generate(f"cdna_kernels/{NAME}.s", **best)
    generate("k_a.s", stamps=True, **best)
```

```python
import re

TRANS = ("v_exp_f32", "v_log_f32", "v_rcp_f32", "v_rsq_f32", "v_sqrt_f32")
REG_RE = re.compile(r"^(-?)(?:abs\()?([vas])(?:(\d+)|\[(\d+):(\d+)\])\)?$")


def regs_of(op):
    op = op.strip()
    if op in ("vcc", "exec", "m0", "scc"):
        return {op}
    if op in ("vcc_lo", "vcc_hi"):
        return {"vcc"}
    if op in ("exec_lo", "exec_hi"):
        return {"exec"}
    m = REG_RE.match(op)
    if not m:
        return set()
    t = m.group(2)
    if m.group(3) is not None:
        return {(t, int(m.group(3)))}
    return {(t, i) for i in range(int(m.group(4)), int(m.group(5)) + 1)}


class Ins:
    __slots__ = ("text", "mn", "kind", "defs", "uses", "tok", "need", "srcc", "srcab", "passes", "stdata", "raw")

    def __init__(self, text, tok=None, need=(), raw=False):
        self.text = text.strip()
        self.tok = tok
        self.need = tuple(need) if not isinstance(need, str) else (need,)
        self.raw = raw
        self.defs, self.uses = set(), set()
        self.srcc, self.srcab, self.stdata = set(), set(), set()
        self.passes = 0
        t = self.text.split(";")[0].strip()
        if t.endswith(":") or t.startswith(".") or not t:
            self.mn, self.kind = t, "label"
            return
        parts = t.split(None, 1)
        mn = parts[0]
        self.mn = mn
        rest = parts[1] if len(parts) > 1 else ""
        ops = [o.strip() for o in rest.split(",")] if rest else []
        mods = []
        if ops:
            last = ops[-1].split()
            ops[-1] = last[0] if last else ""
            mods = last[1:]
        R = [regs_of(o) for o in ops]
        base = re.sub(r"_(e32|e64)$", "", mn)
        allr = set().union(*R) if R else set()
        rest_r = set().union(*R[1:]) if len(R) > 1 else set()
        if base.startswith("v_mfma"):
            self.kind = "mfma"
            self.passes = 8 if "32x32" in base else 4
            self.defs, self.srcab, self.srcc = R[0], R[1] | R[2], R[3]
            self.uses = self.srcab | self.srcc
        elif base.startswith("v_"):
            self.kind = "trans" if base in TRANS else ("dot" if base.startswith("v_dot") else "valu")
            self.uses = set(rest_r) | {"exec"}
            self.defs = set(R[0])
            if base.startswith("v_permlane"):
                self.defs = R[0] | R[1]
                self.uses = R[0] | R[1] | {"exec"}
            elif base.startswith(("v_fmac", "v_dot2c")):
                self.uses |= R[0]
            elif base.startswith(("v_add_co", "v_sub_co", "v_addc_co")):
                self.defs = R[0] | R[1]
                self.uses = set().union(*R[2:]) | {"exec"}
            elif base == "v_nop":
                pass
        elif base.startswith(("buffer_load", "global_load")):
            if "lds" in mods:
                self.kind = "dma"
                self.uses = allr | {"m0", "exec"}
            else:
                self.kind = "vld"
                self.defs, self.uses = R[0], rest_r | {"exec"}
        elif base.startswith(("buffer_store", "global_store")):
            self.kind = "vst"
            self.uses = allr | {"exec"}
            self.stdata = R[0] if base.startswith("buffer") else R[1]
            if not base.endswith(("x3", "x4")):
                self.stdata = set()
        elif base.startswith(("buffer_wbl2", "buffer_inv")):
            self.kind = "vst"
        elif base.startswith("ds_read"):
            self.kind = "dsr"
            self.defs, self.uses = R[0], rest_r | {"exec"}
        elif base.startswith("ds_"):
            self.kind = "dsw"
            self.uses = allr | {"exec"}
        elif base.startswith(("s_load", "s_memtime", "s_memrealtime")):
            self.kind = "smem"
            self.defs, self.uses = R[0], rest_r
        elif base == "s_waitcnt":
            self.kind = "wait"
        elif base == "s_nop":
            self.kind = "nop"
        elif base == "s_barrier":
            self.kind = "barrier"
        elif base.startswith(("s_cbranch", "s_branch", "s_endpgm", "s_setpc")):
            self.kind = "branch"
            if "vcc" in base:
                self.uses = {"vcc"}
            elif "scc" in base:
                self.uses = {"scc"}
        elif base.startswith("s_cmp") or base.startswith("s_bitcmp"):
            self.kind = "salu"
            self.defs, self.uses = {"scc"}, allr
        elif base.startswith("s_"):
            self.kind = "salu"
            if base in ("s_sleep", "s_setprio"):
                return
            self.defs, self.uses = set(R[0]), set(rest_r)
            if not base.startswith(("s_mov", "s_getreg", "s_getpc", "s_mul_i32", "s_cselect")):
                self.defs |= {"scc"}
            if base.startswith(("s_cselect", "s_addc", "s_subb")):
                self.uses |= {"scc"}
            if "saveexec" in base:
                self.defs |= {"exec"}
                self.uses |= {"exec"}
            if base.startswith(("s_addk", "s_mulk")):
                self.uses |= R[0]
        else:
            raise ValueError("unknown instruction: " + text)

    def states(self):
        if self.kind == "label":
            return 0
        if self.kind == "nop":
            return int(self.text.split()[1], 0) + 1
        return 1


def cost(i):
    if i.kind == "label":
        return 0
    if i.kind in ("dsr", "dsw", "trans", "mfma"):
        return 8
    if i.kind == "nop":
        return 4 * i.states()
    return 4


MEM_KINDS = ("dsr", "dsw", "vld", "vst", "dma")
VEC_KINDS = MEM_KINDS + ("valu", "trans", "dot", "mfma")


class Clock:
    def __init__(self):
        self.t = 0
        self.vec = 0
        self.alu = 0
        self.ds = 0
        self.mf = 0
        self.last = None

    def copy(self):
        c = Clock()
        c.__dict__.update(self.__dict__)
        return c

    def ready(self, i):
        k = i.kind
        t = self.t
        if k in VEC_KINDS:
            t = max(t, self.vec)
            if k in ("dsr", "dsw"):
                t = max(t, self.ds)
            if k in ("valu", "trans", "dot", "mfma"):
                t = max(t, self.alu)
            if k in ("mfma", "dot"):
                t = max(t, self.mf + (16 if (k == "dot") != (self.last == "dot") and k == "dot" else 0))
        return t

    def issue(self, i):
        k = i.kind
        if k == "label":
            return self.t
        t = self.ready(i)
        self.t = t + (8 if k == "trans" else 4 * i.states())
        if k == "mfma":
            self.mf = t + 4 * i.passes
            self.alu = t + 8
        elif k in MEM_KINDS:
            if self.last not in MEM_KINDS:
                self.vec = t + (16 if (k in ("vld", "vst", "dma") and self.last != "mfma") else 12)
            if k in ("dsr", "dsw"):
                self.ds = t + (8 if k == "dsr" and "b128" not in i.mn else 16 if k == "dsr" else 52 if "b128" in i.mn else 24)
        if k in VEC_KINDS:
            self.last = k
        return t


def depends(a, b):
    if a.defs & (b.uses | b.defs) or a.uses & b.defs:
        return True
    ka, kb = a.kind, b.kind
    ds, vm = ("dsr", "dsw"), ("vld", "vst", "dma")
    if (ka in ds and kb in ds) or (ka in vm and kb in vm):
        return True
    if a.tok is not None and a.tok in b.need:
        return True
    if a.need and kb in MEM_KINDS:
        return True
    return False


def reorder(lst, clk):
    n = len(lst)
    pred = [[j for j in range(i) if depends(lst[j], lst[i])] for i in range(n)]
    feeds = [False] * n
    for i in reversed(range(n)):
        if lst[i].kind in MEM_KINDS or feeds[i]:
            for j in pred[i]:
                feeds[j] = True
    done, out = set(), []
    while len(out) < n:
        best = None
        for i in range(n):
            if i in done or any(j not in done for j in pred[i]):
                continue
            k = lst[i].kind
            t = clk.ready(lst[i])
            pr = 0 if k in MEM_KINDS else 1 if feeds[i] else 2 if k in VEC_KINDS else 3
            key = (t, pr, i)
            if best is None or key < best[0]:
                best = (key, i)
        i = best[1]
        done.add(i)
        out.append(lst[i])
        clk.issue(lst[i])
    return out


FENCE = ("label", "branch", "barrier", "wait", "mfma", "smem", "nop")


def sched_gap(lst, clk):
    out, run = [], []
    for x in lst:
        if x.kind in FENCE or "exec" in x.defs:
            out += reorder(run, clk)
            run = []
            out.append(x)
            clk.issue(x)
        else:
            run.append(x)
    out += reorder(run, clk)
    return out


def isv(r):
    return isinstance(r, tuple) and r[0] in "va"


def iss(r):
    return (isinstance(r, tuple) and r[0] == "s") or r == "vcc"


VALU_KINDS = ("valu", "trans", "dot")
VM_KINDS = ("vld", "vst", "dma")


def hazard_need(p, c):
    n = 0
    pv = {r for r in p.defs if isv(r)}
    if p.kind in VALU_KINDS:
        if c.kind == "mfma" and pv & c.uses:
            n = max(n, 3 if p.kind == "dot" else 2)
        if c.kind in VALU_KINDS:
            if c.mn.startswith("v_permlane") and pv & c.uses:
                n = max(n, 2)
            if c.mn.startswith(("v_readlane", "v_readfirstlane")) and pv & c.uses:
                n = max(n, 1)
            if p.kind == "trans" and c.kind != "trans" and pv & c.uses:
                n = max(n, 1)
            if "dpp" in c.text or "row_" in c.text:
                if pv & c.uses:
                    n = max(n, 2)
        if p.kind == "dot" and pv & (c.uses | c.defs) and not (c.mn == p.mn and not (pv & (c.uses - c.defs))):
            n = max(n, 3)
        ps = {r for r in p.defs if iss(r)}
        if ps & c.uses:
            if c.kind in VM_KINDS:
                n = max(n, 5)
            elif c.kind in VALU_KINDS:
                n = max(n, 4 if c.mn.startswith(("v_readlane", "v_writelane")) else 2)
            else:
                n = max(n, 1)
    if p.kind == "mfma":
        big = p.passes == 8
        if c.kind == "mfma":
            if p.defs & c.srcab:
                n = max(n, 12 if big else 8)
            if p.defs & c.srcc and not (p.defs == c.srcc and p.passes == c.passes):
                n = max(n, 10 if big else 6)
            if p.defs & c.defs and not (p.defs == c.defs and p.passes == c.passes):
                n = max(n, 10 if big else 6)
        elif p.defs & (c.uses | c.defs):
            n = max(n, 12 if big else 8)
        if c.kind in VALU_KINDS and (p.srcc & c.defs):
            n = max(n, 7 if big else 3)
    if p.kind == "salu" and "m0" in p.defs and c.kind == "dma":
        n = max(n, 1)
    if p.kind == "salu" and "exec" in p.defs and c.kind == "mfma":
        n = max(n, 1)
    if p.kind == "vst" and p.stdata & c.defs:
        n = max(n, 2)
    return n


class State:
    def __init__(self):
        self.vm = []
        self.lg = []
        self.hist = []
        self.done = set()
        self.clk = Clock()
        self.m0 = None
        self.marks = []
        self.ages = []
        self.vmlog = []

    def copy(self):
        s = State()
        s.vm, s.lg, s.hist, s.done = list(self.vm), list(self.lg), list(self.hist), set(self.done)
        s.clk, s.m0 = self.clk.copy(), self.m0
        return s


MERGE_AGE = 110
HOIST_AGE = 80


def finalize(instrs, st=None):
    st = st or State()
    out = []

    def push(i):
        out.append(i)
        st.clk.issue(i)
        if i.kind != "label":
            st.hist.append(i)
            if len(st.hist) > 24:
                st.hist.pop(0)

    def retire_vm(keep):
        while len(st.vm) > keep:
            st.done.add(st.vm.pop(0)[1])

    def retire_lg(keep):
        while len(st.lg) > keep:
            st.done.add(st.lg.pop(0)[1])

    def waits(c, hoist=False):
        touch = c.uses | c.defs
        vi = -1
        for i, e in enumerate(st.vm):
            if e[0] & touch or (e[1] is not None and e[1] in c.need):
                vi = i
        li = -1
        for i, e in enumerate(st.lg):
            if e[0] & touch or (e[1] is not None and e[1] in c.need):
                if c.kind == "dsr" and not e[2] and not (e[0] & c.uses) and not (e[1] is not None and e[1] in c.need):
                    continue
                li = i
        now = st.clk.t if hoist else st.clk.ready(c)
        if hoist and li >= 0 and (now - st.lg[li][3] < HOIST_AGE or any(e[2] for e in st.lg)):
            return
        w = []
        if vi >= 0:
            n = min(len(st.vm) - vi - 1, 63)
            st.ages.append((st.marks[-1][0] if st.marks else "", now - st.vm[vi][2], n, st.vm[vi][1] or st.vm[vi][3], now))
            w.append(f"vmcnt({n})")
            retire_vm(n)
        if li >= 0:
            while li + 1 < len(st.lg) and now - st.lg[li + 1][3] >= MERGE_AGE:
                li += 1
            n = len(st.lg) - li - 1
            if any(e[2] for e in st.lg):
                n = 0
            n = min(n, 15)
            w.append(f"lgkmcnt({n})")
            retire_lg(n)
        if w:
            push(Ins("s_waitcnt " + " ".join(w)))

    for idx, c in enumerate(instrs):
        if c.kind == "label":
            if c.text.startswith(";mark"):
                st.marks.append((c.text.split()[1], st.clk.t))
                continue
            push(c)
            continue
        if c.kind == "wait":
            m = re.search(r"vmcnt\((\d+)\)", c.text)
            if m:
                retire_vm(int(m.group(1)))
            m = re.search(r"lgkmcnt\((\d+)\)", c.text)
            if m:
                n = int(m.group(1))
                if n == 0 or not any(e[2] for e in st.lg):
                    retire_lg(n)
            push(c)
            continue
        for t in c.need:
            known = t in st.done or any(e[1] == t for e in st.vm) or any(e[1] == t for e in st.lg)
            assert known, f"token {t} never produced before: {c.text}"
        waits(c)
        if "m0" in c.defs:
            if st.m0 is not None and st.m0.text == c.text:
                continue
            st.m0 = c
        elif st.m0 is not None and c.defs & st.m0.uses:
            st.m0 = None
        need, dist = 0, 0
        for p in reversed(st.hist):
            need = max(need, hazard_need(p, c) - dist)
            dist += p.states()
            if dist >= 20:
                break
        while need > 0:
            k = min(need, 16)
            push(Ins(f"s_nop {k-1}"))
            need -= k
        push(c)
        if c.kind in VM_KINDS:
            st.vm.append((set(c.defs), c.tok, st.clk.t, " ".join(c.text.split()[:2])))
            st.vmlog.append(st.clk.t)
            assert len(st.vm) <= 63, "too many outstanding vector memory ops: " + c.text
        elif c.kind in ("dsr", "dsw"):
            st.lg.append((set(c.defs), c.tok, False, st.clk.t))
        elif c.kind == "smem":
            st.lg.append((set(c.defs), c.tok, True, st.clk.t))
        if c.kind in MEM_KINDS and st.clk.vec > st.clk.t:
            free = (st.clk.vec - st.clk.t) // 4
            for x in instrs[idx + 1: idx + 12]:
                if x.kind in ("label", "branch", "barrier", "wait"):
                    break
                if x.kind == "mfma":
                    if free > 0:
                        waits(x, hoist=True)
                    break
                if x.kind == "salu" and free > -9:
                    free -= 1
    return out, st


class Seq:
    def __init__(self):
        self.l = []

    def __call__(self, text, tok=None, need=()):
        for ln in text.strip().split("\n"):
            ln = ln.strip()
            if ln:
                self.l.append(Ins(ln, tok=tok, need=need))
        return self

    def ext(self, other):
        self.l.extend(other.l if isinstance(other, Seq) else other)
        return self

    def __len__(self):
        return len(self.l)


def weave(main, fillers, paced=(), start=0, end=None):
    main = main.l if isinstance(main, Seq) else main
    pos = [i for i, x in enumerate(main) if x.kind == "mfma"]
    fillers = [g for g in fillers if g]
    paced = [g for g in paced if g]
    s = Seq()
    if not pos:
        s.l = list(main) + flat(merge(fillers, paced))
        return s
    own = []
    for a, i in enumerate(pos):
        nxt = pos[a + 1] if a + 1 < len(pos) else len(main)
        own.append(main[i + 1:nxt])
    sel = list(range(len(pos)))[start:end]
    tcum, t = [], 0
    for a in sel:
        tcum.append(t)
        t += 4 * main[pos[a]].passes
    pc = {a: [] for a in sel}
    for k, g in enumerate(paced):
        want = t * (k + 0.3) / len(paced)
        big = [b for b in range(len(sel)) if main[pos[sel[b]]].passes == 8] or list(range(len(sel)))
        b = min(big, key=lambda b: abs(tcum[b] - want))
        pc[sel[b]] += g
    probe = Ins("v_mfma_f32_16x16x32_bf16 v[0:3], v[0:3], v[0:3], v[0:3]")

    def length(a, lst):
        clk = Clock()
        clk.issue(main[pos[a]])
        clk.mf = 0
        extra = sum(4 * x.passes - 8 for x in lst if x.kind == "mfma")
        sched_gap([x for x in lst if x.kind != "dot"], clk)
        clk.mf = 0
        return clk.ready(probe) + max(0, extra - 24)

    def place(slack):
        k, res = 0, {}
        for a in sel:
            cur = []
            lim = 4 * main[pos[a]].passes + slack
            while k < len(fillers) and length(a, cur + fillers[k] + pc[a] + own[a]) <= lim:
                cur = cur + fillers[k]
                k += 1
            if not cur and k < len(fillers) and length(a, fillers[k]) > lim and main[pos[a]].passes == 8 and not pc[a]:
                cur = list(fillers[k])
                k += 1
            res[a] = cur
        return res if k == len(fillers) else None
    slack = 0
    while True:
        res = place(slack)
        if res is not None:
            break
        slack += 4
    out = list(main[:pos[0]])
    for a, i in enumerate(pos):
        out.append(main[i])
        clk = Clock()
        clk.issue(main[i])
        body = res.get(a, []) + pc.get(a, [])
        out += sched_gap(body + [x for x in own[a] if x.kind != "dot"], clk)
        out += [x for x in own[a] if x.kind == "dot"]
    s.l = out
    return s


def merge(a, b):
    ca = [sum(cost(x) for x in g) for g in a]
    ta = sum(ca)
    out, cum, k = [], 0, 0
    for g, c in zip(a, ca):
        while k < len(b) and cum >= ta * (k + 0.5) / len(b):
            out.append(b[k])
            k += 1
        out.append(g)
        cum += c
    out += b[k:]
    return out


def flat(gs):
    return [i for g in gs for i in g]


def groups(seq, n=1):
    l = seq.l if isinstance(seq, Seq) else seq
    return [l[i:i + n] for i in range(0, len(l), n)]


def render(instrs):
    return "\n".join((i.text if i.kind == "label" else "    " + i.text) for i in instrs) + "\n"
```

```python
import sys
from asmlib import *

NAME = "sequential_preLN__sliding_block__glu_gated_bilinear__prompt"

KBUF, VBUF, OBUF, HBUF, ACT = 0x0, 0x200000, 0x400000, 0x600000, 0x800000
LFL = 0xF00000
F_O, F_H, F_A, F_S = 0, 512, 1024, 1536
SFL = 0xF10000
EPOCH = 0xF11000
KFL = 0xF20000
STAMP = 0xF80000
WS_BYTES = 0x1000000
R3 = 0x20000
BIGOFF = 0x40000000

DEFAULTS = dict(
    stamps=False,
    force_safe=False,
    force_slow=False,
    dist=3, d0=2,
    tw_mats=2, tw_lines=2,
    t3=True, sp_first=2, sp_cols=1,
    tq=-1,
    pre1=330,
    x=16,
    x_pol="nt",
    pt_pol="sc1",
    ld_local="sc1",
    st_local="sc1",
    st_act="sc1",
    st_out="",
    u_flk=15, u_flv=23, u_pk=19, u_ck=22,
    a_pv=3, a_cv=7, lag=4,
    a_pub=27, a_po=30, a_co=33,
    w_pub=0, w_poll=6, w_chk=24,
    lead_hb=6, epa_steps=5, a_flag=43, a_poll=46,
    epb_chk=40, b_pub=8, lead_ab=8,
)

SX, SWQ, SWO, SWG, SWU, SWD, SOUT, SWS = ("s[8:11]", "s[12:15]", "s[16:19]", "s[20:23]", "s[24:27]",
                                          "s[28:31]", "s[32:35]", "s[36:39]")
sG, sB, sJ, sW, sBLK, sR = "s40", "s41", "s42", "s43", "s44", "s45"
sTAG, sTAGlo, sTAGhi = "s[46:47]", "s46", "s47"
sPTAGlo, sPTAGhi = "s48", "s49"
sXCC, sLOCAL, sBUD = "s50", "s51", "s52"
sM0W = "s53"
sT0, sT1, sT2, sT3, sT4 = "s54", "s55", "s56", "s57", "s58"
sRS = "s59"
sKV = ["s60", "s61", "s62", "s63"]
sCW, sCX, sPAN = "s64", "s65", "s66"
sWS_ = "s67"
sVMASK = "s[68:69]"
sKST, sKFL = "s70", "s71"
sOST, sOF = "s72", "s73"
sGU, sWDN = "s74", "s75"
sAA, sLB, sLW, sOD = "s76", "s77", "s78", "s79"
sONE = ["s80", "s81", "s82", "s83"]
sM0D, sEXW = "s84", "s85"
sEX = "s[86:87]"
sC3, sC4 = "s88", "s89"
sH = ["s90", "s91"]
sGS = "s41"
sHS, sAST, sAF, sOUTO, sTW = "s3", "s4", "s5", "s6", "s7"
SLOT = [n % 6 for n in range(16)] + [6, 7, 4, 5] + [0, 1, 2, 3, 4, 5, 6, 7]
OB_SLOT = 6
AK_, AV_, AWO = 64, 104, 128
WD_HOME = [0, 192, 208, 224, 240, 48, 16, 32, 64, 80, 96, 112, 128, 144]

vL16 = "v1"
vZ = "v2"
vXR = 24


def vr(a, n=1):
    return f"v{a}" if n == 1 else f"v[{a}:{a+n-1}]"


def ar(a, n=1):
    return f"a{a}" if n == 1 else f"a[{a}:{a+n-1}]"


def mf32(d, a, b, c=None):
    return f"v_mfma_f32_32x32x16_bf16 {vr(d,16)}, {a}, {b}, {vr(d,16) if c is None else c}"


def mf16(d, a, b, c=None):
    return f"v_mfma_f32_16x16x32_bf16 {vr(d,4)}, {a}, {b}, {vr(d,4) if c is None else c}"


def off(n):
    return f" offset:{n}" if n else ""


class Gen:
    def __init__(self, **kw):
        self.p = dict(DEFAULTS)
        self.p.update(kw)
        self.tail = []
        self.nlab = 0
        self.stamp_names = []
        self.stashed = {}

    def lab(self, s):
        self.nlab += 1
        return f"L_{s}_{self.nlab}"

    def stamp(self, name):
        s = Seq()
        if not self.p["stamps"] or (self.p["stamps"] is not True and name not in self.p["stamps"]):
            return s
        i = len(self.stamp_names)
        self.stamp_names.append(name)
        s("s_memtime s[94:95]")
        s("s_memrealtime s[92:93]")
        s("s_waitcnt lgkmcnt(0)")
        s(f"v_writelane_b32 v3, s94, {i}")
        s(f"v_writelane_b32 v3, s92, {i+30}")
        return s

    def lazy(self, s, k):
        if self.p["stamps"] and self.p.get("lazy") == k:
            s(";mark lazy")
            s("s_nop 4")
            s("s_memtime s[96:97]")
            self.lazy_i = len(self.stamp_names)
            self.stamp_names.append("lazy")

    def poll_issue(self, dst, voff, soff, imm=0):
        return Seq()(f"buffer_load_dwordx2 {vr(dst,2)}, {voff}, {SWS}, {soff} offen{off(imm)} sc1")

    def poll_check(self, dst, voff, soff, imm=0, expect=None, sync=False):
        ok, spin = self.lab("ok"), self.lab("spin")

        def cmp(s):
            if expect is None:
                s(f"v_cmp_ne_u64 vcc, {sTAG}, {vr(dst,2)}")
            else:
                s(f"v_or_b32 {vr(dst+3)}, 15, {vr(dst+1)}")
                s(f"v_mov_b32 {vr(dst+2)}, {vr(dst)}")
                s(f"v_cmp_ne_u64 vcc, {vr(dst+2,2)}, {vr(expect,2)}")
        s = Seq()
        if not sync:
            cmp(s)
            s(f"s_cbranch_vccz {ok}")
        t = Seq()
        t(f"{spin}:")
        t.ext(self.poll_issue(dst, voff, soff, imm))
        t(f"s_sub_u32 {sBUD}, {sBUD}, 1")
        t("s_cbranch_scc1 L_abort")
        t("s_waitcnt vmcnt(0)")
        cmp(t)
        t(f"s_cbranch_vccnz {spin}")
        if sync:
            s.ext(t)
        else:
            o, _ = finalize(t.l)
            for x in o:
                y = Ins(".raw")
                y.text = x.text if x.kind == "label" else "    " + x.text
                s.l.append(y)
            s(f"{ok}:")
        return s

    def publish(self, need, soff, imm=0):
        slow, back = self.lab("rel"), self.lab("reld")
        s = Seq()
        s(f"s_cmp_lg_u32 {sLOCAL}, 0", need=need)
        s(f"s_cbranch_scc1 {slow}")
        s(f"buffer_store_dwordx2 v[124:125], {vZ}, {SWS}, {soff} offen{off(imm)}")
        s(f"{back}:")
        t = Seq()
        t(f"{slow}:")
        t(f"buffer_store_dwordx2 v[124:125], {vZ}, {SWS}, {soff} offen{off(imm)} sc1")
        t(f"s_branch {back}")
        self.tail.append(t)
        return s

    def dma_voff(self, dst, n, stride, tmp, xmode=False):
        s = Seq()
        a, b, c = vr(tmp), vr(tmp + 1), vr(tmp + 2)
        s(f"v_lshrrev_b32 {a}, 3, v0")
        s(f"v_mul_u32_u24 {a}, {stride}, {a}")
        s(f"v_and_b32 {b}, 7, v0")
        if xmode:
            s(f"v_lshrrev_b32 {c}, 4, v0")
        else:
            s(f"v_bfe_u32 {c}, v0, 4, 1")
            s(f"v_lshlrev_b32 {c}, 2, {c}")
        s(f"v_xor_b32 {b}, {b}, {c}")
        for i in range(n):
            flip = ((i & 1) << 2) if xmode else ((i & 1) << 1)
            s(f"v_xor_b32 {c}, {flip}, {b}")
            s(f"v_lshl_add_u32 {c}, {c}, 4, {a}")
            s(f"v_add_u32 {vr(dst+i)}, {i*(8*stride-1024)}, {c}")
        return s

    def tr32_addr(self, dst, tmp):
        s = Seq()
        a, b, c = vr(tmp), vr(tmp + 1), vr(tmp + 2)
        d = vr(dst)
        s(f"v_bfe_u32 {a}, v0, 2, 2")
        s(f"v_lshrrev_b32 {b}, 5, v0")
        s(f"v_lshl_add_u32 {d}, {b}, 3, {a}")
        s(f"v_lshlrev_b32 {d}, 7, {d}")
        s(f"v_lshrrev_b32 {a}, 1, {a}")
        s(f"v_lshl_add_u32 {a}, {a}, 1, {b}")
        s(f"v_bfe_u32 {b}, v0, 4, 1")
        s(f"v_xor_b32 {a}, {a}, {b}")
        s(f"v_lshl_add_u32 {d}, {a}, 5, {d}")
        s(f"v_and_b32 {a}, 1, v0")
        s(f"v_bfe_u32 {b}, v0, 1, 1")
        s(f"v_lshl_add_u32 {a}, {a}, 1, {b}")
        s(f"v_lshl_add_u32 {d}, {a}, 3, {d}")
        return s

    def split_first(self, src, d, tmp):
        s = Seq()
        s(f"v_cvt_pk_bf16_f32 {vr(d+1)}, {src}, 0")
        s(f"v_lshlrev_b32 {vr(tmp)}, 16, {vr(d+1)}")
        s(f"v_sub_f32 {vr(tmp)}, {src}, {vr(tmp)}")
        s(f"v_cvt_pk_bf16_f32 {vr(d)}, {src}, {vr(tmp)}")
        return s

    def split_second(self, src, d, tmp):
        s = Seq()
        s(f"v_cvt_pk_bf16_f32 {vr(d)}, {src}, {src}")
        s(f"v_and_b32 {vr(tmp)}, 0xffff0000, {vr(d)}")
        s(f"v_sub_f32 {vr(tmp)}, {src}, {vr(tmp)}")
        s(f"v_cvt_pk_bf16_f32 {vr(d+1)}, {vr(tmp)}, 0")
        return s

    def selector(self, d):
        s = Seq()
        s(f"v_bfe_u32 {vr(d)}, v0, 2, 1")
        s(f"v_bfe_u32 {vr(d+1)}, v0, 4, 1")
        s(f"v_cmp_eq_u32 vcc, {vr(d)}, {vr(d+1)}")
        s(f"v_mov_b32 {vr(d+1)}, 0x3f803f80")
        s(f"v_cndmask_b32 {vr(d)}, 0, {vr(d+1)}, vcc")
        for i in (1, 2, 3):
            s(f"v_mov_b32 {vr(d+i)}, {vr(d)}")
        return s

    def stash(self, s, name, reg):
        idx = self.stashed.setdefault(name, 16 + len(self.stashed))
        assert idx < 48
        s(f"v_accvgpr_write_b32 a{idx}, {reg}")

    def fetch(self, s, name, reg):
        s(f"v_accvgpr_read_b32 {reg}, a{self.stashed[name]}")

    def prologue(self):
        s = Seq()
        s("s_cmp_ge_u32 s2, 256")
        s("s_cbranch_scc1 L_end")
        s("s_load_dwordx2 s[8:9], s[0:1], 0")
        s("s_load_dwordx16 s[80:95], s[0:1], 0")
        s("s_load_dwordx2 s[36:37], s[0:1], 72")
        s("s_getpc_b64 s[96:97]")
        s("v_lshrrev_b32 v4, 6, v0")
        s("v_and_b32 v0, 63, v0")
        s(f"v_readfirstlane_b32 {sW}, v4")
        s(f"s_lshr_b32 {sR}, s2, 3")
        s(f"s_lshl2_add_u32 {sT0}, {sR}, {sW}")
        s(f"s_mul_i32 {sT0}, {sT0}, 384")
        s("v_min_u32 v48, 2, v0")
        s(f"v_lshl_add_u32 v48, v48, 7, {sT0}")
        s("v_min_u32 v48, CODE_BYTES, v48")
        s("global_load_dword v255, v48, s[96:97]")
        s(f"s_and_b32 {sG}, s2, 7")
        s(f"s_lshr_b32 {sB}, {sR}, 3")
        s(f"s_and_b32 {sPAN}, {sR}, 7")
        s(f"s_lshl2_add_u32 {sBLK}, {sG}, {sB}")
        s(f"s_lshl_b32 {sM0W}, {sW}, 12")
        s(f"s_lshl2_add_u32 {sCX}, {sBLK}, {sW}")
        s(f"s_lshl_b32 {sCX}, {sCX}, 14")
        s("s_mov_b32 s10, 0x200000")
        s("s_mov_b32 s11, 0x20000")
        s("v_lshrrev_b32 v16, 3, v0")
        s("v_and_b32 v17, 7, v0")
        s("v_lshrrev_b32 v18, 4, v0")
        s("v_xor_b32 v4, v17, v18")
        s("v_lshlrev_b32 v4, 4, v4")
        s("v_lshl_add_u32 v4, v16, 10, v4")
        s("v_xor_b32 v5, 64, v4")
        s("v_add_u32 v5, 7168, v5")
        st0 = self.stage_dma(0)
        self.lazy(s, 0)
        s.ext(st0[0] + st0[1])
        self.lazy(s, 1)
        s("v_and_b32 v18, 1, v18")
        s("v_lshlrev_b32 v18, 2, v18")
        s("v_xor_b32 v6, v17, v18")
        s("v_lshlrev_b32 v6, 4, v6")
        s("v_mul_u32_u24 v16, 3072, v16")
        s("v_add_u32 v6, v6, v16")
        s("v_xor_b32 v7, 32, v6")
        s(f"v_add_u32 v7, {8*3072-1024}, v7")
        s(f"s_mul_i32 {sCW}, {sW}, {16*3072}")
        s(f"s_lshl_b32 {sT0}, {sPAN}, 7")
        s(f"s_add_u32 {sCW}, {sCW}, {sT0}")
        s(f"s_add_u32 {sCW}, {sCW}, 1024")
        s(f"s_mov_b32 {sJ}, {sPAN}")
        s("s_mov_b64 s[12:13], s[82:83]")
        s("s_mov_b32 s14, 0x180000")
        s("s_mov_b32 s15, 0x20000")
        s.ext(st0[2] + st0[3])
        s(f"s_lshl2_add_u32 {sTW}, s2, {sW}")
        s(f"s_lshr_b32 {sT1}, {sTW}, 1")
        s(f"s_mul_i32 {sT1}, {sT1}, 3072")
        s(f"s_and_b32 {sT2}, {sTW}, 1")
        s(f"s_lshl_b32 {sT2}, {sT2}, 9")
        s(f"s_add_u32 {sT1}, {sT1}, {sT2}")
        s("v_and_b32 v49, 3, v0")
        s("v_lshlrev_b32 v49, 7, v49")
        s(f"buffer_load_dword v254, v49, {SWQ}, {sT1} offen offset:1024")
        s("v_bfe_u32 v50, v0, 2, 1")
        s("v_lshl_add_u32 v50, v50, 11, v49")
        s(f"v_add_u32 v50, {sT1}, v50")
        s(f"v_lshl_add_u32 v49, {sTW}, 9, v49")
        s(f"s_lshl_b32 {sT3}, {sG}, 7")
        s(f"s_add_u32 {sT3}, {sT3}, {EPOCH}")
        s(f"s_sub_u32 {sT4}, {sT3}, 128")
        s(f"s_max_u32 {sT4}, {sT4}, {EPOCH}")
        s(f"s_load_dwordx2 s[46:47], s[36:37], {sT3}")
        s(f"s_load_dwordx2 s[48:49], s[36:37], {sT4}")
        for dst, src in (("s[16:17]", "s[84:85]"), ("s[20:21]", "s[88:89]"), ("s[24:25]", "s[90:91]"), ("s[28:29]", "s[92:93]"),
                         ("s[32:33]", "s[94:95]")):
            s(f"s_mov_b64 {dst}, {src}")
        for w2, w3, nb in [("s18", "s19", 0x80000), ("s22", "s23", 0x1C0000), ("s26", "s27", 0x1C0000),
                           ("s30", "s31", 0x1C0000), ("s34", "s35", 0x200000), ("s38", "s39", WS_BYTES)]:
            s(f"s_mov_b32 {w2}, {nb}")
            s(f"s_mov_b32 {w3}, 0x20000")
        self.touch2 = Seq()(f"buffer_load_dword v253, v50, {SWQ}, 0 offen")(f"buffer_load_dword v252, v49, {SWO}, 0 offen")
        if self.p["t3"]:
            s(f"s_lshl2_add_u32 {sT0}, {sR}, {sW}")
            s(f"s_mul_i32 {sT1}, {sT0}, {12*1024}")
            s(f"s_lshl_b32 {sT0}, {sT0}, 12")
            s("v_min_u32 v51, 11, v0")
            s(f"v_lshl_add_u32 v51, v51, 10, {sT1}")
            s("v_min_u32 v52, 3, v0")
            s(f"v_lshl_add_u32 v52, v52, 10, {sT0}")
            self.touch2(f"buffer_load_dword v251, v51, {SWQ}, 0 offen offset:384")
            self.touch2(f"buffer_load_dword v250, v52, {SWO}, 0 offen offset:384")
        if self.p["tq"] < 0:
            s.ext(self.touch2)
        s(f"v_lshlrev_b32 {vL16}, 4, v0")
        s(f"v_mov_b32 {vZ}, 0")
        if self.p["stamps"]:
            s("v_mov_b32 v3, 0")
        s(f"v_add_u32 v8, {2*(8*3072-1024)}, v6")
        s(f"v_add_u32 v9, {2*(8*3072-1024)}, v7")
        for n in range(1, self.p["d0"]):
            s.ext(flat(self.stage_dma(n)))
        self.lazy(s, 2)
        s(f"s_and_b32 {sT0}, {sW}, 1")
        s(f"s_lshr_b32 {sT1}, {sW}, 1")
        s(f"s_lshl_b32 {sT2}, {sT0}, 1")
        s(f"s_or_b32 {sT2}, {sT2}, {sT1}")
        s(f"s_lshl_b32 {sT0}, {sT0}, 13")
        s("v_bfe_u32 v20, v0, 4, 1")
        s(f"v_lshl_add_u32 v20, v20, 12, {sT0}")
        s("v_and_b32 v23, 15, v0")
        s("v_lshl_add_u32 v20, v23, 7, v20")
        s("v_bfe_u32 v21, v0, 1, 3")
        s("v_lshrrev_b32 v22, 5, v0")
        s("v_xor_b32 v18, v21, v22")
        s(f"s_lshl_b32 {sT3}, {sT2}, 1")
        s(f"v_xor_b32 v21, {sT3}, v18")
        s("v_lshl_add_u32 v10, v21, 4, v20")
        for q in (1, 2, 3):
            s(f"v_xor_b32 v{10+q}, {32*q}, v10")
        s(f"s_lshl_b32 {sT0}, {sW}, 1")
        s(f"v_xor_b32 v21, {sT0}, v18")
        s("v_lshlrev_b32 v21, 4, v21")
        s("v_lshl_add_u32 v19, v23, 7, v21")
        s("v_bfe_u32 v22, v0, 4, 1")
        s("v_lshl_add_u32 v19, v22, 3, v19")
        s.ext(self.tr32_addr(14, 20))
        s(f"s_lshl_b32 {sT1}, {sT1}, 6")
        s(f"s_lshl_b32 {sT3}, {sT2}, 12")
        s(f"s_or_b32 {sT3}, {sT3}, {sT1}")
        s(f"v_xor_b32 v14, {sT3}, v14")
        for q in (1, 2, 3):
            s(f"v_xor_b32 v{14+q}, {4096*q}, v14")
        s.ext(self.selector(120))
        s("v_mov_b32 v124, 0")
        s("v_mov_b32 v125, 0")
        return s

    def deferred(self):
        G = []

        def grp():
            G.append(Seq())
            return G[-1]

        def each(txt):
            for ln in txt.strip().split("\n"):
                grp()(ln)

        def stash(name, reg):
            self.stash(grp(), name, reg)
        each(f"""
            s_getreg_b32 {sXCC}, hwreg(HW_REG_XCC_ID)
            s_and_b32 {sXCC}, {sXCC}, 15
            s_mov_b32 {sBUD}, 0x80000
            s_and_b32 {sT2}, {sW}, 1
            s_lshr_b32 {sT3}, {sW}, 1
            s_lshl_b32 {sKST}, {sJ}, 1
            s_add_u32 {sKST}, {sKST}, {sT3}
            s_lshl_b32 {sKFL}, {sKST}, 6
            s_lshl_b32 {sKST}, {sKST}, 7
            s_lshl_b32 {sT4}, {sBLK}, 1
            s_add_u32 {sT4}, {sT4}, {sT2}
            s_add_u32 {sKST}, {sKST}, {sT4}
            s_lshl_b32 {sKST}, {sKST}, 10
            s_add_u32 {sKFL}, {sKFL}, {sT4}
            s_lshl_b32 {sKFL}, {sKFL}, 8
            s_add_u32 {sKFL}, {sKFL}, {KFL}
            s_lshl_b32 {sEXW}, {sT3}, 2
            s_add_u32 {sEXW}, {sEXW}, {sT2}
            s_lshl_b32 {sEXW}, {sEXW}, 10
            s_add_u32 {sEXW}, {sEXW}, {R3}
            s_lshl_b32 {sM0D}, {sW}, 13
            v_and_b32 v64, 15, v0
            v_lshlrev_b32 v64, 4, v64
            v_lshrrev_b32 v65, 5, v0
            v_lshl_add_u32 v65, v65, 8, v64""")
        stash("vlane", "v65")
        each(f"""
            v_bfe_u32 v66, v0, 4, 1
            v_lshl_add_u32 v67, v66, 11, v65
            v_add_u32 v67, {sEXW}, v67""")
        stash("vexw", "v67")
        each(f"""
            v_lshl_add_u32 v67, v66, 16, v65
            v_add_u32 v67, {VBUF}, v67""")
        stash("vgst", "v67")
        each("""
            v_lshrrev_b32 v66, 4, v0
            v_lshl_add_u32 v67, v66, 9, v64""")
        stash("ord", "v67")
        each(f"""
            v_bfe_u32 v64, v0, 2, 2
            v_lshl_add_u32 v67, v66, 3, v64
            v_lshlrev_b32 v67, 7, v67
            v_lshrrev_b32 v64, 1, v64
            v_and_b32 v66, 1, v66
            v_lshl_add_u32 v64, v64, 1, v66
            v_xor_b32 v64, {sW}, v64
            v_lshl_add_u32 v67, v64, 5, v67
            v_and_b32 v64, 3, v0
            v_lshl_add_u32 v67, v64, 3, v67""")
        stash("wotr", "v67")
        each(f"""
            v_bfe_u32 v65, v0, 2, 1
            v_lshl_add_u32 v64, v65, 4, v64
            s_lshl_b32 {sT0}, {sW}, 2
            v_add_lshl_u32 v64, {sT0}, v64, 3""")
        stash("opoll", "v64")
        each("v_lshrrev_b32 v64, 3, v0\nv_lshlrev_b32 v65, 11, v64")
        for i in range(4):
            each(f"v_sub_u32 v66, v{6+i}, v65")
            if i:
                each(f"v_subrev_u32 v66, {16384*i}, v66")
            stash(f"w1k{i}", "v66")
        for i in range(2):
            each(f"v_lshl_add_u32 v66, v64, 9, v{6+i}")
            if i:
                each("v_add_u32 v66, 4096, v66")
            stash(f"gu{i}", "v66")
        each(f"""
            v_and_b32 v64, 0x7ff, v14
            s_lshl_b32 {sT0}, {sT2}, 11
            v_xor_b32 v65, {sT0}, v64""")
        stash("gutr", "v65")
        each(f"""
            s_lshl_b32 {sT0}, {sT2}, 5
            v_xor_b32 v65, {sT0}, v64
            v_add_u32 v65, {sM0W}, v65""")
        stash("wdtr", "v65")
        each(f"""
            s_lshl_b32 {sT1}, {sJ}, 2
            s_add_u32 {sT1}, {sT1}, {sW}
            s_lshl_b32 {sLB}, {sBLK}, 11
            s_add_u32 {sLB}, {sLB}, {LFL}
            s_lshl_b32 {sOF}, {sT1}, 3
            s_add_u32 {sOF}, {sOF}, {sLB}
            s_lshl_b32 {sOD}, {sBLK}, 16
            s_lshl_b32 {sT0}, {sT1}, 5
            s_add_u32 {sOUTO}, {sOD}, {sT0}
            s_add_u32 {sOD}, {sOD}, {OBUF}
            s_lshl_b32 {sOST}, {sT1}, 10
            s_add_u32 {sOST}, {sOST}, {sOD}
            s_add_u32 {sOD}, {sOD}, {sM0W}
            s_and_b32 {sT0}, {sT1}, 15
            s_lshl_b32 {sT0}, {sT0}, 7
            s_add_u32 {sT0}, {sT0}, {sLB}
            v_mov_b32 v65, {sT0}
            s_lshl_b32 {sT0}, {sG}, 7
            s_add_u32 {sT0}, {sT0}, {SFL}
            v_mov_b32 v66, {sT0}""")
        grp()("v_cmp_lt_u32 vcc, 31, v0\nv_cndmask_b32 v64, v65, v66, vcc")
        if self.p["fl_touch"]:
            each(f"""
                v_and_b32 v65, 1, v0
                v_lshl_add_u32 v65, v65, 7, {sKFL}""")
            grp()("v_cmp_gt_u32 vcc, 2, v0\nv_cndmask_b32 v64, v64, v65, vcc")
        stash("touch", "v64")
        if self.p["st_local"] == "":
            each(f"""
                v_and_b32 v64, 7, v0
                v_lshl_add_u32 v64, v64, 7, {sOST}
                v_bfe_u32 v65, v0, 3, 1
                v_lshl_add_u32 v64, v65, 15, v64
                v_bfe_u32 v65, v0, 4, 1
                v_lshl_add_u32 v64, v65, 21, v64""")
            stash("touch2", "v64")
        each(f"""
            s_lshl_b32 {sT0}, {sT1}, 6
            s_lshl_b32 {sT4}, {sBLK}, 1
            s_sub_u32 {sT4}, {sT4}, 8
            s_add_u32 {sT0}, {sT0}, {sT4}
            s_lshl_b32 {sT0}, {sT0}, 10""")
        for i in range(4):
            each(f"s_add_u32 {sKV[i]}, {sT0}, {2048*i}")
            grp()(f"s_cmp_ge_u32 {sBLK}, {4-i}\ns_cselect_b32 {sKV[i]}, {sKV[i]}, {BIGOFF}\ns_cselect_b32 {sONE[i]}, 0x3f803f80, 0")
        each(f"""
            s_mov_b32 s68, 0x0000ffff
            s_mov_b32 s69, 0x0000ffff
            v_min_u32 v64, 7, v0
            v_add_u32 v64, {sT4}, v64
            v_max_i32 v64, 0, v64
            s_lshl_b32 {sT4}, {sG}, 3
            v_cmp_gt_u32 {sEX}, {sT4}, v64
            s_lshr_b32 {sT0}, {sT1}, 1
            s_lshl_b32 {sT0}, {sT0}, 6
            v_add_lshl_u32 v64, {sT0}, v64, 8
            v_add_u32 v64, {KFL}, v64
            s_mov_b32 s87, 0
            v_mov_b32 v65, {sKFL}
            v_and_b32 v66, 7, v0
            v_lshlrev_b32 v66, 6, v66
            v_bfe_u32 v67, v0, 3, 2
            v_add_lshl_u32 v66, v66, v67, 1
            v_add_lshl_u32 v66, {sT4}, v66, 8
            v_add_u32 v66, {KFL - 128}, v66""")
        grp()("v_cmp_lt_u32 vcc, 31, v0\nv_cndmask_b32 v65, v64, v65, vcc\nv_cndmask_b32 v66, v64, v66, vcc")
        stash("kpoll", "v65")
        stash("vpoll", "v66")
        each(f"""
            s_lshl_b32 {sT0}, {sG}, 2
            s_add_u32 {sT0}, {sT0}, {sW}
            s_lshl_b32 {sLW}, {sT0}, 11
            s_add_u32 {sLW}, {sLW}, {LFL}
            s_lshl_b32 {sHS}, {sT0}, 16
            s_add_u32 {sHS}, {sHS}, {HBUF}
            s_mul_i32 {sAST}, {sT0}, {2*112*1024}
            s_lshl_b32 {sT0}, {sR}, 12
            s_add_u32 {sAST}, {sAST}, {sT0}
            s_lshl_b32 {sT0}, {sT3}, 11
            s_add_u32 {sAST}, {sAST}, {sT0}
            s_add_u32 {sAST}, {sAST}, {ACT}
            s_lshl_b32 {sAF}, {sR}, 3
            s_add_u32 {sAF}, {sAF}, {sLW}
            s_min_u32 {sT0}, {sR}, 27
            s_lshl_b32 {sGU}, {sT0}, 7
            s_mul_i32 {sT0}, {sW}, {16*3584}
            s_add_u32 {sGU}, {sGU}, {sT0}
            s_lshl_b32 {sC3}, {sG}, 12""")
        grp()(f"s_cmp_eq_u32 {sG}, 7\ns_cselect_b32 {sC4}, 0, {sC3}")
        each(f"""
            s_mul_i32 {sWDN}, {sW}, {448*1024}
            s_lshl_b32 {sT0}, {sJ}, 7
            s_add_u32 {sWDN}, {sWDN}, {sT0}
            s_mul_i32 {sAA}, {sBLK}, {2*112*1024}
            s_mul_i32 {sT0}, {sW}, {28*1024}
            s_add_u32 {sAA}, {sAA}, {sT0}
            s_add_u32 {sAA}, {sAA}, {ACT}
            s_mul_i32 {sTW}, {sTW}, {14*128}
            v_min_u32 v64, {self.p["tw_lines"] - 1}, v0
            v_lshlrev_b32 v64, 7, v64""")
        stash("tw", "v64")
        each("""
            v_and_b32 v64, 31, v0
            v_lshrrev_b32 v65, 5, v0
            v_lshlrev_b32 v65, 2, v65
            v_sub_u32 v64, v64, v65""")
        for r in range(16):
            t = vr(66 + (r & 3))
            each(f"""
                v_subrev_u32 {t}, {8*(r>>2) + (r&3)}, v64
                v_ashrrev_i32 {t}, 31, {t}
                v_and_b32 {t}, 0xf149f2ca, {t}
                v_accvgpr_write_b32 a{r}, {t}""")
        for i in range(5):
            each(f"v_mov_b32 v64, {sONE[i] if i < 4 else '0x3f803f80'}")
            for k in range(16):
                each(f"v_accvgpr_write_b32 {ar(AV_+16*i+k)}, v64")
        for lo, hi in ((sTAGlo, sTAGhi), (sPTAGlo, sPTAGhi)):
            each(f"""
                s_mul_i32 {lo}, {lo}, 1664525
                s_add_u32 {lo}, {lo}, 1013904223
                s_mul_i32 {hi}, {hi}, 22695477
                s_add_u32 {hi}, {hi}, 0x9e3779b1""")
        each(f"""
            v_mov_b32 v64, {sTAGlo}
            v_mov_b32 v65, {sPTAGlo}
            v_cndmask_b32 v64, v64, v65, {sEX}""")
        stash("explo", "v64")
        each(f"""
            v_mov_b32 v64, {sTAGhi}
            v_mov_b32 v65, {sPTAGhi}
            v_cndmask_b32 v64, v64, v65, {sEX}
            v_or_b32 v64, 15, v64""")
        stash("exphi", "v64")
        return [g.l for g in G]

    def stage_dma(self, n):
        slot = SLOT[n] * 16384
        tok = f"st{n}"
        g = [Seq() for _ in range(4)]
        if n < 8:
            xp = self.p["x_pol"]
            g[0](f"s_add_u32 m0, {sM0W}, {slot}")
            g[0](f"s_lshl_b32 {sRS}, {sPAN}, 7")
            g[0](f"s_add_u32 {sRS}, {sRS}, {sCX}")
            g[0](f"buffer_load_dwordx4 v4, {SX}, {sRS} offen {xp} lds", tok=tok)
            g[1](f"s_add_u32 m0, {sM0W}, {slot}")
            g[1](f"buffer_load_dwordx4 v5, {SX}, {sRS} offen offset:1024 {xp} lds", tok=tok)
            g[1](f"s_add_u32 m0, {sM0W}, {slot + 2048}")
            g[1](f"s_mul_i32 {sRS}, {sPAN}, {64*3072}")
            g[2](f"s_add_u32 m0, {sM0W}, {slot + 2048}")
            g[3](f"s_add_u32 m0, {sM0W}, {slot + 2048}")
            g[2](f"s_add_u32 {sRS}, {sRS}, {sCW}")
            g[2](f"buffer_load_dwordx4 v6, {SWQ}, {sRS} offen lds", tok=tok)
            g[3](f"buffer_load_dwordx4 v7, {SWQ}, {sRS} offen offset:1024 lds", tok=tok)
            g[3](f"s_add_u32 {sPAN}, {sPAN}, 1")
            g[3](f"s_and_b32 {sPAN}, {sPAN}, 7")
        elif n < 16:
            a = g[0]
            if n == 8:
                a(f"s_lshr_b32 {sRS}, {sW}, 1")
                a(f"s_add_u32 {sPAN}, {sJ}, {sRS}")
                a(f"s_and_b32 {sPAN}, {sPAN}, 7")
                a(f"s_and_b32 {sRS}, {sW}, 1")
                a(f"s_mul_i32 {sCW}, {sRS}, {32*3072}")
                a(f"s_lshl_b32 {sRS}, {sJ}, 7")
                a(f"s_add_u32 {sCW}, {sCW}, {sRS}")
                a(f"s_add_u32 {sCW}, {sCW}, 2048")
            if n == 12:
                a(f"s_sub_u32 {sCW}, {sCW}, 2048")
            a(f"s_add_u32 m0, {sM0W}, {slot}")
            a(f"s_mul_i32 {sRS}, {sPAN}, {64*3072}")
            a(f"s_add_u32 {sRS}, {sRS}, {sCW}")
            for i in range(4):
                if i:
                    g[i](f"s_add_u32 m0, {sM0W}, {slot}")
                g[i](f"buffer_load_dwordx4 v{6+i}, {SWQ}, {sRS} offen{off(1024*i)} lds", tok=tok)
            g[3](f"s_add_u32 {sPAN}, {sPAN}, 2")
            g[3](f"s_and_b32 {sPAN}, {sPAN}, 7")
        elif n < 20:
            for i in range(4):
                g[i](f"s_add_u32 m0, {sM0W}, {slot}")
                if i == 0 and n == 16:
                    g[0](f"s_lshl_b32 {sCX}, {sW}, 8")
                    g[0](f"s_add_u32 {sCX}, {sCX}, {sJ}")
                    g[0](f"s_lshl_b32 {sCX}, {sCX}, 7")
                elif i == 0:
                    g[0](f"s_add_u32 {sCX}, {sCX}, {128*1024}")
                g[i](f"buffer_load_dwordx4 v{6+i}, {SWO}, {sCX} offen{off(1024*i)} lds", tok=tok)
        else:
            c = n - 20
            for i in range(4):
                g[i](f"s_add_u32 m0, {sM0W}, {slot + 2048*(i >> 1)}")
                if i == 0:
                    g[0](f"s_add_u32 {sGS}, {sC3}, {c*4096}")
                    g[0](f"s_and_b32 {sGS}, {sGS}, 0x7000")
                    g[0](f"s_mul_i32 {sGS}, {sGS}, 56")
                    g[0](f"s_add_u32 {sGS}, {sGS}, {sGU}")
                g[i](f"buffer_load_dwordx4 v{14 + (i & 1)}, {(SWG, SWU)[i >> 1]}, {sGS} offen{off(1024*(i & 1))} {'nt ' if c in self.p['gu_nt'] else ''}lds", tok=tok)
        return [x.l for x in g]

    def chunk4(self, a, dst, c):
        a(f"s_add_u32 {dst}, {sC4}, {c*4096}")
        if c:
            a(f"s_sub_u32 {sPAN}, {dst}, {7*4096}")
            a(f"s_cselect_b32 {dst}, {dst}, {sPAN}")

    def claim(self, slot, owner):
        prev = self.lds[slot]
        self.lds[slot] = owner
        if prev is None:
            return ()
        assert prev[0] == "wd" and self.seen["dr"] >= 8 * (prev[1] + 1), ("LDS slot busy", slot, prev, owner)
        return (f"wdr{prev[1]}",)

    def release(self, *slots):
        for a in slots:
            assert self.lds[a] is not None and self.lds[a][0] != "wd", (a, self.lds[a])
            self.lds[a] = None

    def wd_piece(self, n):
        hc, i = n >> 2, n & 3
        slot = self.wd_slots[hc]
        a = Seq()
        a(f"s_add_u32 m0, {sM0W}, {slot*16384}", need=self.claim(slot, ("wd", hc)) if i == 0 else ())
        if i == 0 and hc % 2 == 0:
            self.chunk4(a, sWS_, hc >> 1)
            a(f"s_lshl_b32 {sWS_}, {sWS_}, 4")
            a(f"s_add_u32 {sWS_}, {sWS_}, {sWDN}")
        elif i == 0:
            a(f"s_add_u32 {sWS_}, {sWS_}, 32768")
        a(f"buffer_load_dwordx4 v{6+i}, {SWD}, {sWS_} offen{off(1024*i)} {'nt ' if hc < self.p['wd_nt'] else ''}lds", tok=f"wd{hc}")
        return a.l

    def wd_read(self, n):
        hc, i = n >> 3, n & 7
        assert hc < self.wd_max, ("W_down home still in use", hc)
        assert self.seen["wd"] >= 4 * (hc + 1), ("W_down half-chunk not issued", hc)
        slot = self.wd_slots[hc] * 16384
        a = Seq()
        hi = slot & ~0xFFFF
        if hi != self.wd_hi:
            a(f"v_xor_b32 v17, {hi ^ self.wd_hi}, v17")
            a(f"v_xor_b32 v18, {hi ^ self.wd_hi}, v18")
            self.wd_hi = hi
        k, ct, jj = i >> 2, (i >> 1) & 1, i & 1
        a(f"ds_read_b64_tr_b16 {ar(WD_HOME[hc] + 2*i, 2)}, v{17+ct} offset:{(slot & 0xFFFF) + 2048*k + 512*jj}",
          tok=f"wdr{hc}", need=f"wd{hc}")
        return a.l

    def take(self, kind, n):
        out = []
        for _ in range(n):
            c = self.cnt[kind]
            if kind == "wo" or kind == "gu":
                base = 16 if kind == "wo" else 20
                if c % 4 == 0:
                    self.cur[kind] = self.stage_dma(base + c // 4)
                    nd = self.claim(SLOT[base + c // 4], (kind, c // 4))
                    [x for x in self.cur[kind][0] if "m0" in x.defs][0].need = nd
                pc = list(self.cur[kind][c % 4])
                if kind == "gu" and self.ts_reg == "v18":
                    a = Seq()
                    self.fetch(a, f"gu{c & 1}", "v18")
                    pc = a.l + pc[:-1] + [Ins(pc[-1].text.replace(f"v{14 + (c & 1)},", "v18,", 1), tok=pc[-1].tok)]
                if kind == "wo" and not self.w1k:
                    a = Seq()
                    self.fetch(a, f"w1k{c & 3}", "v18")
                    pc = a.l + pc[:-1] + [Ins(pc[-1].text.replace(f"v{6 + (c & 3)},", "v18,", 1), tok=pc[-1].tok)]
                out.append(pc)
            elif kind == "wd":
                out.append(self.wd_piece(c))
            elif kind == "dr":
                out.append(self.wd_read(c))
            elif kind == "k":
                kt = 7 - c
                out.append(Seq()(f"buffer_load_dwordx4 {ar(AK_+4*kt,4)}, {vL16}, {SWS}, {sKV[kt>>1]} offen{off(1024*(kt&1))} sc1").l)
            elif kind == "v":
                a = Seq()(f"s_mov_b64 exec, {sVMASK}")
                for kt in (7 - 2 * c, 6 - 2 * c):
                    for st in range(2):
                        a(f"buffer_load_dwordx4 {ar(AV_+8*kt+4*st,4)}, v11, {SWS}, {sKV[kt>>1]} offen{off(1024*(kt&1)+512*st)} sc1")
                a("s_mov_b64 exec, -1")
                out.append(a.l)
            elif kind == "od":
                q, hf, i = c >> 3, (c >> 2) & 1, c & 3
                slot = (8 if q == 0 else OB_SLOT) + hf
                a = Seq()(f"s_add_u32 m0, {sM0W}, {slot*16384}", need=self.claim(slot, ("od", q)) if i == 0 else ())
                if i == 0 and c:
                    a(f"s_add_u32 {sOD}, {sOD}, 16384")
                a(f"buffer_load_dwordx4 {vL16}, {SWS}, {sOD} offen{off(1024*i)} {self.p['ld_local']} lds", tok=f"od{q}{hf}")
                out.append(a.l)
            elif kind == "tw":
                a = Seq()
                self.fetch(a, "tw", self.ts_reg)
                nm, L = self.p["tw_mats"], self.p["tw_lines"]
                a(f"buffer_load_dword a{184 + c % 3}, {self.ts_reg}, {(SWG, SWU, SWD)[c % nm]}, {sTW} offen{off(c // nm * L * 128)}")
                a.l[-1].defs = set()
                out.append(a.l)
            elif kind == "dm":
                a = Seq()(f"s_add_u32 {sT3}, {sOST}, {(c & 1) * 32768 + (c >> 1) * (HBUF - OBUF)}")
                a(f"buffer_store_dwordx4 v[120:123], {vL16}, {SWS}, {sT3} offen sc1", tok="dummy")
                out.append(a.l)
            elif kind == "t2":
                a = Seq()
                self.fetch(a, "touch2", self.ts_reg)
                a(f"buffer_load_dword a186, {self.ts_reg}, {SWS}, 0 offen sc1", need=("dummy",) if self.cnt["dm"] else ())
                out.append(a.l)
            elif kind == "ts":
                a = Seq()
                self.fetch(a, "touch", self.ts_reg)
                a(f"buffer_load_dword a187, {self.ts_reg}, {SWS}, 0 offen {self.p['pt_pol']}")
                out.append(a.l)
            self.cnt[kind] = c + 1
        return out

    def events(self, key):
        vm, ds = [], []
        self.seen = dict(self.cnt)
        for kind, n in self.p["bg"].get(key, ()):
            (ds if kind == "dr" else vm).extend(self.take(kind, n))
        return vm, ds

    def p1(self):
        p = self.p
        D = p["dist"]
        X, AK, AV, AQ, WR = 128, 32, 48, 64, 80
        XS, CS = 112, 116
        SEL = vr(120, 4)
        PX = R3 + 24576
        self.ts_reg = "v18"
        s = Seq()
        dfr = self.deferred()
        if p["tq"] >= 0:
            dfr.insert(p["tq"], self.touch2.l)
        s.ext(flat(dfr[:p["pre1"]]))
        dfr = dfr[p["pre1"]:]
        self.lazy(s, 3)
        for n in range(p["d0"], D):
            s.ext(flat(self.stage_dma(n)))
        s.ext(self.stamp("issued"))

        def stage_of(u):
            return u if u < 8 else 8 + (u - 8) // 2

        def reads(u):
            g = []
            slot = (SLOT[stage_of(u)] * 16384) & 0xFFFF
            a = Seq()
            if u == 8:
                assert SLOT[8] < 4
                a("v_bfe_u32 v18, v14, 12, 2")
                a("v_and_b32 v14, 0x7ff, v14")
                a("v_lshl_add_u32 v14, v18, 11, v14")
                for q in (1, 2, 3):
                    a(f"v_xor_b32 v{14+q}, {2048*q}, v14")
            elif u and (SLOT[stage_of(u)] >= 4) != (SLOT[stage_of(u - 1)] >= 4):
                for q in range(10 if u < 8 else 14, 18):
                    a(f"v_xor_b32 v{q}, 0x10000, v{q}")
            o = slot + (2048 if u < 8 else 8192 * (u & 1))
            for q in range(4):
                f = WR + 16 * (u & 1) + 4 * q
                if u < 8:
                    g.append(Seq()(f"ds_read_b128 {vr(X+16*u+4*q,4)}, v{10+q} offset:{slot}").l)
                g.append(Seq()(f"ds_read_b64_tr_b16 {vr(f,2)}, v{14+q} offset:{o}").l)
                g.append(Seq()(f"ds_read_b64_tr_b16 {vr(f+2,2)}, v{14+q} offset:{o+512}").l)
            return groups(a, 1), g

        def work(u):
            m = Seq()
            ps = u >> 3
            acc = (AK, AV, AQ)[ps]
            for q in range(4):
                xf, wf = vr(X + 16 * (u & 7) + 4 * q, 4), vr(WR + 16 * (u & 1) + 4 * q, 4)
                z = "0" if (u & 7) == 0 and q == 0 else None
                m(mf32(acc, xf, wf, z) if ps == 1 else mf32(acc, wf, xf, z))
                if ps == 0 and q in (0, 2):
                    m(mf16(XS, SEL, xf, z))
                if q < 2 or ps == 2:
                    m(mf16(CS, SEL, wf, z))
            if u == 23:
                m.l = m.l[:-2] + [m.l[-1], m.l[-2]]
            if ps == 0:
                for q in (0, 2):
                    for i in range(4):
                        r = vr(X + 16 * u + 4 * q + i)
                        m(f"v_dot2c_f32_bf16 v{124 + (i & 1)}, {r}, {r}")
            return m

        def rank1(src, acc, transposed):
            q = Seq()
            q.ext(self.split_second(src, 112, 18))
            q(mf32(acc, vr(112, 4), vr(20, 4)) if transposed else mf32(acc, vr(20, 4), vr(112, 4)))
            return q

        def scale_pack(acc, mul):
            q = Seq()
            for i in range(8):
                q(f"v_mul_f32 {vr(acc+2*i)}, {mul(2*i)}, {vr(acc+2*i)}")
                q(f"v_mul_f32 {vr(acc+2*i+1)}, {mul(2*i+1)}, {vr(acc+2*i+1)}")
                q(f"v_cvt_pk_bf16_f32 {vr(acc+i)}, {vr(acc+2*i)}, {vr(acc+2*i+1)}")
            return q

        ex = {}
        post = {}

        def add(u, seq, n=1):
            ex.setdefault(u, []).extend(groups(seq, n))
        a = Seq()
        for u in range(4):
            a(f"ds_read_b64 {vr(vXR+2*u,2)}, v19 offset:{u*4096}")
        xres = groups(a, 1)
        a = Seq()
        a(f"v_lshl_add_u32 v19, {sW}, 10, {vL16}")
        a(f"v_add_u32 v19, {PX}, v19")
        add(2, a)
        per = -(-len(dfr) // 7)
        for u in range(7):
            ex.setdefault(u, []).extend(dfr[u * per:(u + 1) * per])
        a = Seq()
        a(f"v_mov_b32 v114, v{CS}")
        a("v_add_f32 v113, v124, v125")
        a("ds_write_b96 v19, v[112:114]", tok="pxk")
        post[7] = a
        a = Seq()
        a(f"v_add_u32 v10, {sEXW}, {vL16}")
        self.fetch(a, "vlane", "v11")
        self.fetch(a, "vexw", "v12")
        self.fetch(a, "vgst", "v13")
        self.fetch(a, "explo", "v4")
        self.fetch(a, "exphi", "v5")
        a("v_xor_b32 v22, 2048, v19")
        a("v_xor_b32 v23, 1024, v19")
        add(7, a)
        a = Seq()
        a("s_barrier", need="pxk")
        a("ds_read_b64 v[20:21], v22")
        a("ds_read_b32 v127, v23 offset:8")
        add(8, a)
        a = Seq()
        a("v_add_f32 v124, v113, v21")
        a("v_add_f32 v20, v112, v20")
        a("v_mov_b32 v125, v124")
        a("v_add_f32 v127, v127, v114")
        a(f"v_mul_f32 v23, {1.0/512!r}, v20")
        a("v_permlane32_swap_b32 v124, v125")
        a("v_add_f32 v124, v124, v125")
        a(f"v_mul_f32 v124, {1.0/512!r}, v124")
        a("v_fma_f32 v124, -v23, v23, v124")
        a("v_max_f32 v124, 0, v124")
        a("v_add_f32 v124, 0x3727c5ac, v124")
        a("v_rsq_f32 v126, v124")
        a("v_mul_f32 v23, -0.5, v23")
        a.ext(self.split_first("v23", 20, 18))
        a("v_mov_b32 v22, 0")
        a("v_mov_b32 v23, 0")
        a("v_mov_b32 v114, 0")
        a("v_mov_b32 v115, 0")
        a.ext(rank1("v127", AK, True))
        add(9, a)
        e = scale_pack(AK, lambda i: "v126")
        e.l.insert(12, Ins(f"buffer_store_dwordx4 {vr(AK,4)}, {vL16}, {SWS}, {sKST} offen sc1", tok="kst"))
        e.l.insert(13, Ins(f"s_add_u32 {sT4}, {sKST}, 0x10000"))
        e(f"buffer_store_dwordx4 {vr(AK+4,4)}, {vL16}, {SWS}, {sT4} offen sc1", tok="kst")
        add(10, e)
        a = Seq()
        a(f"ds_write_b128 v10, {vr(AK,4)} offset:8192", tok="exw")
        a(f"s_and_b32 {sT4}, {sTAGhi}, -16")
        a(f"s_or_b32 {sT4}, {sT4}, {sXCC}")
        a(f"v_mov_b32 v124, {sTAGlo}")
        a(f"v_mov_b32 v125, {sT4}")
        add(11, a)
        a = Seq()
        a(f"ds_write_b128 v10, {vr(AK+4,4)} offset:{8192+2048}", tok="exw")
        a("v_mul_f32 v127, 0.5, v126")
        a.ext(self.split_first("v127", AQ, 18))
        add(12, a)
        a = Seq()
        for r in (AQ + 1, AQ + 2, AQ + 3, AQ + 5, AQ + 6, AQ + 7):
            a(f"v_mov_b32 v{r}, 0")
        a(f"v_mov_b32 v{AQ+4}, 0x3f803f80")
        a(f"v_mul_f32 v126, {0.25*1.4426950408889634!r}, v126")
        a("v_accvgpr_write_b32 a188, v126")
        a("v_and_b32 v126, 15, v0")
        a("v_lshlrev_b32 v126, 3, v126")
        add(13, a)
        add(14, Seq()(mf32(AK, vr(AQ, 4), vr(AQ + 4, 4), "0")))
        FZ = vZ
        if p["fl_full"]:
            FZ = "v126"
        flK = Seq()(f"buffer_store_dwordx2 v[124:125], {FZ}, {SWS}, {sKFL} offen sc1", need="kst")
        add(p["u_flk"], flK)
        a = Seq()
        a(f"v_mov_b32 v112, v{CS}")
        a("ds_write_b32 v19, v112 offset:12", tok="pxv")
        a("v_xor_b32 v19, 1024, v19")
        post[15] = a
        a = Seq()
        a("s_barrier", need="pxv")
        a("ds_read_b32 v127, v19 offset:12")
        add(16, a)
        a = Seq()
        a("v_add_f32 v127, v127, v112")
        a.ext(rank1("v127", AV, False))
        self.fetch(a, "kpoll", "v19")
        add(17, a)
        e = scale_pack(AV, lambda i: vr(AK + i))
        e.l.insert(12, Ins(f"buffer_store_dwordx4 {vr(AV,4)}, v13, {SWS}, {sKST} offen sc1", tok="vst"))
        e(f"buffer_store_dwordx4 {vr(AV+4,4)}, v13, {SWS}, {sKST} offen offset:512 sc1", tok="vst")
        add(18, e)
        KP = 192 if p["u_pk"] >= 21 else 128
        assert p["u_pk"] >= 18 and (KP == 192 or p["u_ck"] <= 24)
        add(p["u_pk"], self.poll_issue(KP, "v19", "0"))
        add(19, Seq()(f"ds_write_b128 v12, {vr(AV,4)} offset:16384", tok="exw"))
        a = Seq()(f"ds_write_b128 v12, {vr(AV+4,4)} offset:{16384+512}", tok="exw")
        for r in range(16):
            a(f"v_accvgpr_read_b32 {vr(AK+r)}, a{r}")
        add(20, a)
        a = Seq()
        for r in range(16):
            a(f"v_sub_f32 {vr(AV+15-r)}, 0xf149f2ca, {vr(AK+15-r)}")
        add(21, a)
        self.flV = Seq()(f"buffer_store_dwordx2 v[124:125], {FZ}, {SWS}, {sKFL} offen offset:128 sc1", need="vst")
        add(p["u_flv"], self.flV)
        self.ckK = self.poll_check(KP, "v19", "0", expect=4).ext(self.stamp("ck"))
        self.fetch(self.ckK, "vpoll", "v19")
        ex.setdefault(p["u_ck"], []).append(self.ckK.l)
        a = Seq()("v_accvgpr_read_b32 v127, a188")
        for nm, r in (("wotr", "v13"), ("ord", "v210"), ("gutr", "v214")):
            self.fetch(a, nm, r)
        a(f"v_lshl_add_u32 v215, {sW}, 11, {vL16}")
        a(f"v_add_u32 v215, {R3}, v215")
        a(f"v_lshl_add_u32 v12, {sW}, 11, v11")
        a(f"v_add_u32 v12, {R3}, v12")
        a(f"v_add_u32 v11, {VBUF}, v11")
        a(f"v_add_u32 v211, {R3}, v210")
        a(f"v_add_u32 v210, {OB_SLOT * 16384}, v210")
        add(22, a)
        a = Seq()
        for nm, r in (("gu0", "v14"), ("gu1", "v15"), ("opoll", "v16"), ("wdtr", "v17")):
            self.fetch(a, nm, r)
        add(23, a)

        s("s_waitcnt lgkmcnt(0)")
        s("s_barrier", need="st0")
        s.ext(self.stamp("first"))
        if p["stamps"] and p.get("lazy") is not None:
            s(f"v_writelane_b32 v3, s96, {self.lazy_i}")
        assert D <= 3
        s.ext(flat(merge(reads(0)[1] + xres, self.stage_dma(D))))
        nd = D + 1
        pend = []
        for u in range(24):
            fill = []
            if u + 1 < 24:
                new = stage_of(u + 1) != stage_of(u)
                if new:
                    fill.append(Seq()("s_barrier", need=f"st{stage_of(u+1)}").l)
                fill += reads(u + 1)[1]
                if new and nd < 16:
                    pend += self.stage_dma(nd)
                    nd += 1
            fill += ex.get(u, [])
            if u + 2 < 24:
                fill += reads(u + 2)[0]
            k = len(pend) if u < 7 else min(2, len(pend))
            if u == 17:
                assert nd == 16 and not pend
                a = Seq()
                for i in range(4):
                    self.fetch(a, f"w1k{i}", f"v{6+i}")
                fill += groups(a, 1)
            self.w1k = u > 17
            if u in (16, 18, 20, 22):
                self.release(SLOT[stage_of(u) - 2])
            vm, ds = self.events(("u", u))
            if u in (6, 9, 12, 17):
                assert all(self.cnt[a] == self.seen[a] for a in ("tw", "ts", "gu", "t2", "wo"))
            assert self.cnt["k"] == 0 or u > p["u_ck"]
            assert self.cnt["wo"] == 0 or u >= 7
            s.ext(weave(work(u), fill, pend[:k] + vm))
            pend = pend[k:]
            if u in post:
                s.ext(post[u])
            if p["stamps"] is not True:
                s.ext(self.stamp(f"u{u}"))
            if u == 7:
                s.ext(self.stamp("kpass"))
            if u == 15:
                s.ext(self.stamp("vpass"))
        s.ext(rank1(f"v{CS}", AQ, True))
        s.ext(flat(ex.get(24, [])))
        vm, ds = self.events(("u", 24))
        assert self.cnt["k"] == 0 or p["u_ck"] <= 24
        s.ext(flat(vm[:2]))
        s("v_xor_b32 v18, 64, v17")
        e = scale_pack(AQ, lambda i: "v127")
        e.l.insert(12, Ins(f"ds_write_b128 v10, {vr(AQ,4)}", tok="exw"))
        e(f"ds_write_b128 v10, {vr(AQ+4,4)} offset:2048", tok="exw")
        s.ext(e)
        s.ext(flat(vm[2:]))
        s.ext(self.stamp("qpass"))
        return s

    S_, O_, Q_, MD_, MF_ = (128, 144), (160, 176), 200, 32, 48
    TILES = ([(8, 0), (8, 1), (9, 1)] + [(kt, 0) for kt in range(7, -1, -1)] + [(kt, 1) for kt in range(7, 0, -1)])

    def qk(self, i):
        kt, q = self.TILES[i]
        c = vr(self.MD_, 16) if kt == q + 8 else vr(self.MF_, 16) if kt == q else "0"
        return mf32(self.S_[i & 1], ar(AK_ + 4 * kt, 4), vr(self.Q_ + 4 * q, 4), c)

    def run_tiles(self, hooks):
        lag = self.p["lag"]
        s = Seq()
        s(self.qk(0))
        s.ext(flat(hooks.get(-1, [])))
        pend = []
        NP, PB = 2 * lag + 2, 64
        n = len(self.TILES)
        for i, (kt, q) in enumerate(self.TILES):
            S, O = self.S_[i & 1], self.O_[q]
            for half in range(2):
                ht = 2 * i + half
                b = Seq()
                if half == 0 and i + 1 < n:
                    b(self.qk(i + 1))
                for e in range(8):
                    r = S + 8 * half + e
                    b(f"v_exp_f32 {vr(r)}, {vr(r)}")
                    if e in ((3, 7) if half == 0 else (1, 5)) and pend and (pend[0][0] < 3 or i >= 3 + lag):
                        b(pend.pop(0)[1])
                P = PB + 4 * (ht % NP)
                for e in range(4):
                    r = S + 8 * half + 2 * e
                    b(f"v_cvt_pk_bf16_f32 {vr(P + e)}, {vr(r)}, {vr(r+1)}")
                pend.append((i, mf32(O, ar(AV_ + 8 * kt + 4 * half, 4), vr(P, 4), "0" if (i < 2 and half == 0) else None)))
                hk = hooks.get(ht, [])
                pos = [j for j, x in enumerate(b.l) if x.kind == "mfma"] or [3]
                per = -(-len(hk) // len(pos))
                out = []
                for j, x in enumerate(b.l):
                    out.append(x)
                    if j in pos:
                        k = pos.index(j)
                        clk = Clock()
                        clk.issue(x)
                        out += sched_gap(flat(hk[k * per:(k + 1) * per]), clk)
                s.ext(out)
                if self.p["stamps"] is not True:
                    s.ext(self.stamp(f"a{ht}"))
                if ht == 5:
                    s.ext(self.stamp("own"))
                if ht == 22:
                    assert all(a[0] >= 11 for a in pend)
                    s.ext(self.finish_o(0))
                    s.ext(self.stamp("attA"))
        for a in pend:
            s(a[1])
        return s

    def finish_o(self, q):
        O = self.O_[q]
        back = self.lab("att")
        slow = self.slow_softmax(q, back)
        s = Seq()
        if q:
            s(f"s_add_u32 {sT1}, {sOST}, 32768")
        s(f"v_subrev_u32 v208, 0x2b800000, {vr(O+8)}")
        s(f"v_cmp_lt_u32 vcc, 0x28000000, v208")
        if self.p["force_slow"]:
            s(f"s_branch {slow}")
        else:
            s(f"s_cbranch_vccnz {slow}")
        s(f"{back}:")
        s(f"v_rcp_f32 {vr(O+8)}, {vr(O+8)}")
        for i in range(4):
            s(f"v_mul_f32 {vr(O+2*i)}, {vr(O+8)}, {vr(O+2*i)}")
            s(f"v_mul_f32 {vr(O+2*i+1)}, {vr(O+8)}, {vr(O+2*i+1)}")
            s(f"v_cvt_pk_bf16_f32 {vr(O+i)}, {vr(O+2*i)}, {vr(O+2*i+1)}")
        s(f"buffer_store_dwordx4 {vr(O,4)}, {vL16}, {SWS}, {sT1 if q else sOST} offen {self.p['st_local']}", tok=f"ost{q}")
        return s

    AC_ = (112, 104)

    def acc_init(self, q):
        e = Seq()
        for u in range(2):
            src, dd = vXR + 4 * q + 2 * u, self.AC_[q] + 4 * u
            e(f"v_lshlrev_b32 {vr(dd)}, 16, {vr(src)}")
            e(f"v_and_b32 {vr(dd+1)}, 0xffff0000, {vr(src)}")
            e(f"v_lshlrev_b32 {vr(dd+2)}, 16, {vr(src+1)}")
            e(f"v_and_b32 {vr(dd+3)}, 0xffff0000, {vr(src+1)}")
        return e

    def attention(self):
        p = self.p
        Q = self.Q_
        self.ts_reg = "v213"
        self.wd_max = 6
        s = Seq()
        s("s_barrier", need="exw")
        s(f"ds_read_b128 {vr(Q,4)}, v215")
        s(f"ds_read_b128 {ar(AK_+32,4)}, v215 offset:8192")
        s(f"ds_read_b128 {vr(Q+4,4)}, v215 offset:1024")
        s(f"s_mov_b64 exec, {sVMASK}")
        for i in range(4):
            s(f"ds_read_b128 {ar(AV_+64+4*i,4)}, v12 offset:{16384+512*i}")
        s("s_mov_b64 exec, -1")
        s(f"ds_read_b128 {ar(AK_+36,4)}, v215 offset:{8192+1024}")
        s.ext(self.stamp("exch"))
        self.release(SLOT[14], SLOT[15])
        hooks = {}

        def hook(k, g):
            hooks.setdefault(k, []).append(g.l if isinstance(g, Seq) else g)
        a = self.acc_init(0)
        a("v_add_u32 v12, 0x10000, v13")
        hook(-1, a)
        hV = self.poll_check(108, "v19", "0", 128, expect=4)
        hV("v_and_b32 v109, 15, v109")
        hV(f"v_cmp_ne_u32 vcc, {sXCC}, v109")
        hV(f"s_or_b32 {sLOCAL}, vcc_hi, {1 if p['force_safe'] else 0}")
        hV(f"v_mov_b32 v125, {sTAGhi}")
        hV.ext(self.stamp("cv"))
        for k in range(36):
            if k + 25 == p["u_flv"]:
                hook(k, self.flV)
            if k + 25 == p["u_ck"]:
                hook(k, self.ckK)
            if k == p["a_pv"]:
                hook(k, self.poll_issue(108, "v19", "0", 128))
            if k == p["a_cv"]:
                hook(k, hV)
            if k == p["a_bar"]:
                assert self.cnt["wo"] == 16
                hook(k, Seq()("s_barrier", need=("st16", "st17", "st18", "st19")))
            if k == p["a_pub"]:
                hook(k, self.publish("ost0", sOF, F_O).ext(self.stamp("pubA")))
            if k == p["a_po"]:
                hook(k, self.poll_issue(22, "v16", sLB, F_O))
            if k == p["a_co"]:
                hook(k, self.poll_check(22, "v16", sLB, F_O).ext(self.stamp("co")))
            if k == p["a_bar"] + 1:
                self.release(8, 9)
            vm, ds = self.events(("a", k))
            assert self.cnt["k"] == 0 or k + 25 >= p["u_ck"]
            assert self.cnt["v"] == 0 or k >= p["a_cv"] > p["a_pv"] >= max(p["u_ck"], p["u_flv"]) - 25
            assert self.cnt["od"] == 0 or k >= p["a_co"] > p["a_bar"] > 6
            for g in vm:
                hook(k, g)
            if ds:
                hook(k, flat(ds))
        assert self.cnt["k"] == 8 and self.cnt["v"] == 4 and self.cnt["wo"] == 16
        s.ext(self.run_tiles(hooks))
        s.ext(flat(self.take("od", min(2, 8 - self.cnt["od"]))))
        s.ext(self.finish_o(1))
        s.ext(self.stamp("attB"))
        return s

    RING, NR = 64, 13

    def ring(self, i):
        return self.RING + 4 * (i % self.NR)

    def h_order(self):
        xa, xb = self.p["x"], self.p["xb"]
        steps = ([(k, (0,)) for k in range(xa)] + [(k, (0, 1)) for k in range(xa, 32 - xb)] + [(k, (0,)) for k in range(32 - xb, 32)]
                 + [(k, (1,)) for k in range(32 - xb, 32)] + [(k, (1,)) for k in range(xa)])
        return steps, [(k, q) for k, qs in steps for q in qs]

    def h_load(self, i):
        k, q = self.h_order()[1][i]
        a = Seq()
        if k % 4 == 0:
            if q == 1 and self.p["x"] <= k < 32 - self.p["xb"]:
                a(f"s_add_u32 {sH[1]}, {sH[0]}, 32768")
            else:
                a(f"s_add_u32 {sH[q]}, {sC3}, {(k >> 2)*4096}")
                a(f"s_and_b32 {sH[q]}, {sH[q]}, 0x7000")
                if q == 1 and k == (32 - self.p["xb"]) % 32:
                    a(f"s_add_u32 {sHS}, {sHS}, 32768")
                a(f"s_add_u32 {sH[q]}, {sH[q]}, {sHS}")
        a(f"buffer_load_dwordx4 {vr(self.ring(i),4)}, {vL16}, {SWS}, {sH[q]} offen{off(1024*(k%4))} {self.p['ld_local']}")
        return a.l

    def wo_phase(self):
        p = self.p
        s = Seq()
        F, NB = 128, 16
        self.wd_max = 12
        rest = self.take("od", 8 - self.cnt["od"])
        d = Seq()
        for k in range(16):
            o = SLOT[16 + (k >> 2)] * 16384 + 4096 * (k & 3)
            b = "v12" if o >= 0x10000 else "v13"
            d(f"ds_read_b64_tr_b16 {ar(AWO+4*k,2)}, {b} offset:{o & 0xFFFF}", tok="wo")
            d(f"ds_read_b64_tr_b16 {ar(AWO+4*k+2,2)}, {b} offset:{(o & 0xFFFF)+512}", tok="wo")
        vm, ds = self.events("woa")
        s.ext(flat(merge(groups(d, 1) + ds, rest + vm)))
        self.nh = 0
        for q in range(2):
            AC = self.AC_[q]
            base, off0 = ("v211", 0) if q == 0 else ("v210", 0)
            if q == 1:
                s.ext(self.poll_check(22, "v16", sLB, F_O + 256, sync=p["ob_sync"]))
                s.ext(self.stamp("cob"))
                self.release(*SLOT[16:20])
                vm, ds = self.events("wob")
                idle = groups(self.acc_init(1), 1) + groups(self.p3_setup(), 1) + ds
                od = self.take("od", 8)
                s.ext(flat(od[:4]))
                s.ext(flat(merge(idle, od[4:])))
                s.ext(self.publish("hst0", sOF, F_H))
                s.ext(flat(vm))

            def rd(i):
                return Seq()(f"ds_read_b128 {vr(F+4*(i % NB),4)}, {base} offset:{off0 + (i>>1)*2048 + (i&1)*256}").l

            ex = {}
            if q == 0:
                ex[p["w_pub"]] = self.publish("ost1", sOF, F_O + 256)
                if not p["ob_sync"]:
                    ex[31] = self.poll_issue(22, "v16", sLB, F_O + 256)
            else:
                ex[p["w_poll"]] = self.poll_issue(22, "v19", sLW, F_H)
                ex[p["w_chk"]] = self.poll_check(22, "v19", sLW, F_H).ext(self.stamp("chA"))
                for i in range(p["w_chk"] + 1, 32, 2):
                    ex[i] = Seq().ext(self.h_load(self.nh))
                    self.nh += 1
            if -1 in ex:
                s.ext(ex[-1])
            s("s_barrier", need=(f"od{q}0",))
            s.ext(self.stamp(f"w{q}b"))
            for i in range(8):
                s.ext(rd(i))
            for i in range(32):
                s(mf16(AC + 4 * (i & 1), ar(AWO + 4 * (i >> 1), 4), vr(F + 4 * (i % NB), 4)))
                if i == 8:
                    s("s_barrier", need=(f"od{q}1", "wo"))
                if i + 8 < 32:
                    s.ext(rd(i + 8))
                if i in ex:
                    s.ext(ex[i])
                vm, ds = self.events((f"w{q}", i))
                s.ext(flat(vm + ds))
            hp = vXR + 4 * q
            s(f"s_add_u32 {sT0}, {sOST}, {HBUF - OBUF + q*32768}")
            for i in range(4):
                s(f"v_cvt_pk_bf16_f32 {vr(hp+i)}, {vr(AC+2*i)}, {vr(AC+2*i+1)}")
            s(f"v_permlane16_swap_b32 {vr(hp)}, {vr(hp+2)}")
            s(f"v_permlane16_swap_b32 {vr(hp+1)}, {vr(hp+3)}")
            s(f"buffer_store_dwordx4 {vr(hp,4)}, {vL16}, {SWS}, {sT0} offen {p['st_local']}", tok=f"hst{q}")
            s.ext(self.stamp(f"wo{q}"))
        return s

    def p3_setup(self):
        s = Seq()
        s("v_mov_b32 v10, v214")
        s("v_xor_b32 v11, 0x800, v214")
        s("v_xor_b32 v12, 64, v214")
        s("v_xor_b32 v13, 0x840, v214")
        s("v_and_b32 v19, 31, v0")
        s("v_lshlrev_b32 v5, 10, v19")
        s("v_lshrrev_b32 v4, 5, v0")
        s("v_lshl_add_u32 v5, v4, 4, v5")
        s("v_lshlrev_b32 v19, 3, v19")
        s("v_min_u32 v16, 6, v0")
        s(f"s_mul_i32 {sT0}, {sW}, 7")
        s(f"v_add_lshl_u32 v16, {sT0}, v16, 3")
        return s

    def slow_softmax(self, q, back):
        Q, P = self.Q_, 248
        S, C, O = 216, 232, self.O_[q]
        lab = self.lab("slow")
        t = Seq()
        t(f"{lab}:")
        t("s_nop 15")
        tiles = list(range(q, q + 9))

        def guarded(kt, body):
            if kt >= 8:
                t.ext(body)
                return
            skip = self.lab("skip")
            t(f"s_cmp_eq_u32 {sONE[kt >> 1]}, 0")
            t(f"s_cbranch_scc1 {skip}")
            t.ext(body)
            t("s_nop 15")
            t(f"{skip}:")

        def bias(kt, base):
            b = Seq()
            for i in range(16):
                if kt == q:
                    b(f"v_add_f32 {vr(C+i)}, {vr(self.MF_+i)}, {base}")
                elif kt == q + 8:
                    b(f"v_add_f32 {vr(C+i)}, {vr(self.MD_+i)}, {base}")
                else:
                    b(f"v_mov_b32 {vr(C+i)}, {base}")
            return b
        t("v_mov_b32 v208, 0xff7fffff")
        for kt in tiles:
            b = bias(kt, vZ)
            b(mf32(S, ar(AK_ + 4 * kt, 4), vr(Q + 4 * q, 4), vr(C, 16)))
            for i in range(0, 16, 2):
                b(f"v_max3_f32 v208, {vr(S+i)}, {vr(S+i+1)}, v208")
            guarded(kt, b)
        t("v_mov_b32 v209, v208")
        t("v_permlane32_swap_b32 v208, v209")
        t("v_max_f32 v208, v208, v209")
        t("v_sub_f32 v208, 0, v208")
        for i in range(16):
            t(f"v_mov_b32 {vr(O+i)}, 0")
        for kt in tiles:
            b = bias(kt, "v208")
            b(mf32(S, ar(AK_ + 4 * kt, 4), vr(Q + 4 * q, 4), vr(C, 16)))
            for i in range(16):
                b(f"v_exp_f32 {vr(S+i)}, {vr(S+i)}")
            for i in range(8):
                b(f"v_cvt_pk_bf16_f32 {vr(P+i)}, {vr(S+2*i)}, {vr(S+2*i+1)}")
            b(mf32(O, ar(AV_ + 8 * kt, 4), vr(P, 4)))
            b(mf32(O, ar(AV_ + 8 * kt + 4, 4), vr(P + 4, 4)))
            guarded(kt, b)
        t("s_nop 15")
        t(f"s_branch {back}")
        self.tail.append(t)
        return lab

    def act_load(self, i):
        q, k = divmod(i, 28)
        a = Seq()
        if k % 4 == 0:
            self.chunk4(a, sH[0], k >> 2)
            if i == 28:
                a(f"s_add_u32 {sAA}, {sAA}, {112*1024}")
            a(f"s_add_u32 {sH[0]}, {sH[0]}, {sAA}")
        a(f"buffer_load_dwordx4 {vr(self.ring(64+i),4)}, {vL16}, {SWS}, {sH[0]} offen{off(1024*(k%4))} {self.p['ld_local']}")
        return a.l

    def stats_load(self, with_mu):
        s = Seq()
        s("v_min_u32 v20, 7, v0")
        s("v_lshlrev_b32 v20, 3, v20")
        s(f"s_lshl_b32 {sT4}, {sG}, 7")
        s(f"s_add_u32 {sT4}, {sT4}, {SFL}")
        s.ext(self.poll_issue(22, "v20", sT4))
        t = self.poll_check(22, "v20", sT4)
        u = Seq()
        if with_mu:
            u(f"buffer_load_dword v126, v19, {SWS}, {sLW} offen offset:{F_S} sc1")
            u(f"buffer_load_dword v127, v19, {SWS}, {sLW} offen offset:{F_S+256} sc1")
        u(f"buffer_load_dword v14, v19, {SWS}, {sLB} offen offset:{F_S+4} sc1")
        u(f"buffer_load_dword v15, v19, {SWS}, {sLB} offen offset:{F_S+260} sc1")
        return s, t, u

    def p3(self):
        p = self.p
        x = p["x"]
        ACC = (128, 192)
        WF, CS = 32, 116
        SEL = vr(120, 4)
        steps, hl = self.h_order()
        s = Seq()
        PF = min(self.NR - 2, x)
        hi_state = [False]
        assert SLOT[20] < 4

        def rd_w(pos):
            k = steps[pos][0]
            slot = SLOT[20 + (k >> 2)] * 16384
            o = (slot & 0xFFFF) + (k & 3) * 4096
            q = []
            for sg in range(4):
                d = WF + 16 * (pos & 1) + 4 * sg
                q.append(Seq()(f"ds_read_b64_tr_b16 {vr(d,2)}, v{10+sg} offset:{o}").l)
                q.append(Seq()(f"ds_read_b64_tr_b16 {vr(d+2,2)}, v{10+sg} offset:{o+512}").l)
            return q

        def flip(pos):
            hi = SLOT[20 + (steps[pos][0] >> 2)] >= 4
            a = Seq()
            if hi != hi_state[0]:
                for i in range(4):
                    a(f"v_xor_b32 v{10+i}, 0x10000, v{10+i}")
                hi_state[0] = hi
            return groups(a, 1)

        def correct(q, keep):
            e = Seq()
            e.ext(self.split_first(f"v{126+q}", 20, 4))
            e("v_mov_b32 v22, 0")
            e("v_mov_b32 v23, 0")
            if q == 0:
                e("v_mov_b32 v122, 0")
                e("v_mov_b32 v123, 0")
            for sg in range(4):
                e.ext(self.split_second(f"v{116+sg}", 120, 4))
                e(mf32(ACC[q] + 16 * sg, vr(120, 4), vr(20, 4)))
            return e

        def product(q):
            e = Seq()
            A = ACC[q]
            if q:
                e(f"s_add_u32 {sAST}, {sAST}, {112*1024}")
            e(f"s_xor_b32 {sT1}, {sAST}, 2048")
            for ft in range(2):
                g, u = A + 32 * ft, A + 32 * ft + 16
                so = sAST if ft == 0 else sT1
                for i in range(8):
                    e(f"v_mul_f32 {vr(g+2*i)}, {vr(g+2*i)}, {vr(u+2*i)}")
                    e(f"v_mul_f32 {vr(g+2*i+1)}, {vr(g+2*i+1)}, {vr(u+2*i+1)}")
                    e(f"v_cvt_pk_bf16_f32 {vr(g+i)}, {vr(g+2*i)}, {vr(g+2*i+1)}")
                    if i == 3:
                        e(f"buffer_store_dwordx4 {vr(g,4)}, {vL16}, {SWS}, {so} offen {p['st_act']}", tok=f"ast{q}")
                e(f"buffer_store_dwordx4 {vr(g+4,4)}, {vL16}, {SWS}, {so} offen offset:1024 {p['st_act']}", tok=f"ast{q}")
            return e

        assert self.cnt["gu"] >= 4
        landed = min(p["gu_landed"], self.cnt["gu"] // 4)
        s("s_barrier", need=[f"st{20+c}" for c in range(landed)])
        self.release(OB_SLOT, OB_SLOT + 1, 8, 9)
        nh = self.nh
        pre = []
        while nh < p["h_first"]:
            pre.append(self.h_load(nh))
            nh += 1
        s.ext(flat(merge(rd_w(0), pre)))
        s.ext(self.stamp("p3s"))
        st_issue, st_check, st_load = self.stats_load(True)
        hi_ = 0
        started = [False, False]
        firstB = x + 1
        LB = p["lead_hb"]
        nst = len(steps)
        self.na = 0
        spread = {}

        def spread_add(first, n, gs):
            per = -(-len(gs) // n)
            for a in range(n):
                spread.setdefault(first + a, []).extend(gs[a * per:(a + 1) * per])
        spread_add(33, p["epa_steps"], groups(correct(0, 0).ext(product(0)), 1))
        spread_add(33 + p["epa_steps"], 2, groups(correct(1, 0), 1))
        self.epB = product(1)
        for pos, (k, qs) in enumerate(steps):
            m = Seq()
            for sg in range(4):
                for n, q in enumerate(qs):
                    m(mf32(ACC[q] + 16 * sg, vr(WF + 16 * (pos & 1) + 4 * sg, 4), vr(self.ring(hi_ + n), 4),
                           None if started[q] else "0"))
                if sg == 0 and pos < 32:
                    m(mf16(CS, SEL, vr(WF + 16 * (pos & 1), 4), None if pos else "0"))
            for q in qs:
                started[q] = True
            hi_ += len(qs)
            fill, paced = [], []
            if pos + 1 < nst:
                kn = steps[pos + 1][0]
                if pos + 1 < 32 and kn % 4 == 0 and kn // 4 >= landed:
                    assert self.cnt["gu"] >= kn + 4, kn
                    fill.append(Seq()("s_barrier", need=f"st{20 + (kn >> 2)}").l)
                fill += rd_w(pos + 1)
            if pos + 2 < nst:
                fill += flip(pos + 2)
            if pos == p["h_pub"]:
                fill.append(self.publish("hst1", sOF, F_H + 256).l)
            if pos == x - LB - 1 - p["hb_gap"]:
                paced.append(self.poll_issue(22, "v19", sLW, F_H + 256).l)
            if pos == x - LB - 1:
                fill.append(self.poll_check(22, "v19", sLW, F_H + 256).ext(self.stamp("chB")).l)
            lim = min(len(hl), hi_ + PF, nh + len(qs) + 1)
            if pos < x - LB:
                lim = min(lim, firstB)
            hs = []
            while nh < lim:
                hs.append(self.h_load(nh))
                nh += 1
            if pos == p["a_poll"]:
                paced.append(self.poll_issue(22, "v16", sLB, F_A).l)
            if pos == p["a_chk"]:
                fill.append(self.poll_check(22, "v16", sLB, F_A).l)
            if pos > p["a_chk"]:
                assert nh == len(hl)
                lim = min(hi_ + PF - 64, self.na + 2)
                while self.na < lim:
                    hs.append(self.act_load(self.na))
                    self.na += 1
            for c in range(x // 4 + 1, 8 - p["xb"] // 4):
                if pos == min(4 * c + 8, 33):
                    self.release(SLOT[20 + c])
            vm, ds = self.events(("p3", pos))
            paced += merge(hs, vm) if hs else vm
            fill += ds
            if pos == p["st_pos"][0]:
                fill.append(st_issue.l)
            if pos == p["st_pos"][1]:
                fill.append(st_check.l)
            if pos == p["st_pos"][2]:
                assert self.cnt["gu"] == 32 and self.seen["gu"] == 32
                paced += groups(st_load, 2)
            if pos == 31:
                t = Seq()
                t(f"s_lshl_b32 {sT0}, {sW}, 8")
                t(f"s_add_u32 {sT0}, {sT0}, {SLOT[20 + x//4] * 16384}")
                t(f"v_lshl_add_u32 v20, v0, 2, {sT0}")
                t(f"ds_write_b32 v20, v{CS}", tok="csw")
                for sg in (1, 2, 3):
                    t(f"v_xor_b32 v{20+sg}, {256*sg}, v20")
                fill += groups(t, 1)
            if pos == 32:
                t = Seq()
                t("s_barrier", need="csw")
                for sg in (1, 2, 3):
                    t(f"ds_read_b32 v{CS+sg}, v{20+sg}")
                fill = groups(t, 1) + fill
            fill += spread.get(pos, [])
            if pos == p["a_flag"]:
                fill.append(self.publish("ast0", sAF, F_A).l)
            s.ext(weave(m, fill, paced))
            if p["stamps"] is not True:
                s.ext(self.stamp(f"s{pos}"))
            if pos == x - 1:
                s.ext(self.stamp("p3a"))
            if pos == 31:
                s.ext(self.stamp("p3b"))
        assert p["a_poll"] >= 35 + p["epa_steps"]
        s.ext(self.stamp("p3c"))
        return s

    def spare(self):
        s = Seq()
        F = 128
        s.ext(self.publish("hst1", sOF, F_H + 256))
        s(f"s_lshl_b32 {sT0}, {sG}, 2")
        s(f"s_add_u32 {sT0}, {sT0}, {sR}")
        s(f"s_sub_u32 {sT0}, {sT0}, 28")
        s(f"s_and_b32 {sT1}, {sW}, 1")
        s(f"s_lshl_b32 {sLW}, {sT0}, 3")
        s(f"s_add_u32 {sLW}, {sLW}, {sT1}")
        s(f"s_lshl_b32 {sLW}, {sLW}, 8")
        s(f"s_add_u32 {sLW}, {sLW}, {LFL}")
        s(f"s_lshl_b32 {sT0}, {sT0}, 1")
        s(f"s_add_u32 {sT0}, {sT0}, {sT1}")
        s(f"s_lshl_b32 {sHS}, {sT0}, 15")
        s(f"s_lshr_b32 {sT1}, {sW}, 1")
        s(f"s_lshl_b32 {sT1}, {sT1}, 14")
        s(f"s_add_u32 {sHS}, {sHS}, {sT1}")
        s(f"s_add_u32 {sHS}, {sHS}, {HBUF}")
        s(f"s_and_b32 {sT0}, {sT0}, 7")
        s(f"s_lshl_b32 {sT0}, {sT0}, 3")
        s(f"s_lshl_b32 {sAF}, {sG}, 7")
        s(f"s_add_u32 {sAF}, {sAF}, {sT0}")
        s(f"s_add_u32 {sAF}, {sAF}, {SFL}")
        st = Seq()
        st.ext(self.poll_issue(22, "v19", sLW, F_H))
        st.ext(self.poll_check(22, "v19", sLW, F_H))
        for i in range(16):
            if i % 4 == 0:
                st(f"s_add_u32 {sT2}, {sHS}, {i*1024}")
            st(f"buffer_load_dwordx4 {vr(F+4*i,4)}, {vL16}, {SWS}, {sT2} offen{off(1024*(i%4))} sc1")
        st("v_mov_b32 v112, 0")
        st("v_mov_b32 v113, 0")
        for i in range(16):
            st(mf16(116, vr(120, 4), vr(F + 4 * i, 4), None if i else "0"))
        for i in range(64):
            st(f"v_dot2c_f32_bf16 v{112 + (i & 1)}, {vr(F+i)}, {vr(F+i)}")
        st("v_add_f32 v112, v112, v113")
        st("v_mov_b32 v113, v112")
        st("v_permlane32_swap_b32 v112, v113")
        st("v_add_f32 v117, v112, v113")
        st(f"s_lshl_b32 {sT0}, {sW}, 9")
        st(f"s_add_u32 {sT0}, {sT0}, {SLOT[20]*16384}")
        st(f"v_lshl_add_u32 v20, v0, 3, {sT0}")
        st("ds_write_b64 v20, v[116:117]", tok="spw")
        st("s_barrier", need="spw")
        st("v_xor_b32 v20, 1024, v20")
        st("ds_read_b64 v[112:113], v20")
        st("v_add_f32 v116, v116, v112")
        st("v_add_f32 v117, v117, v113")
        st(f"v_mul_f32 v116, {1.0/512!r}, v116")
        st(f"v_mul_f32 v117, {1.0/512!r}, v117")
        st("v_fma_f32 v117, -v116, v116, v117")
        st("v_max_f32 v117, 0, v117")
        st("v_add_f32 v117, 0x3727c5ac, v117")
        st("v_rcp_f32 v117, v117")
        st("v_mul_f32 v116, -0.5, v116")
        st(f"buffer_store_dwordx2 v[116:117], v19, {SWS}, {sLW} offen offset:{F_S} sc1", tok="sst")
        st.ext(self.publish("sst", sAF))
        self.cnt, self.wd_hi, self.lds = self.saved
        assert self.cnt["wd"] % 4 == 0
        s("s_barrier", need="st20")
        self.release(OB_SLOT, OB_SLOT + 1, 8, 9)
        h0 = self.cnt["wd"] // 4
        self.wd_slots = self.wd_slots[:h0] + [(8, 9, OB_SLOT, OB_SLOT + 1)[h & 3] for h in range(h0, 14)]
        self.seen = dict(self.cnt)
        s.ext(flat(self.take("dr", 8 * h0 - self.cnt["dr"])))
        s("v_lshrrev_b32 v32, 2, v0")
        s("v_and_b32 v33, 3, v0")
        s("v_lshlrev_b32 v33, 7, v33")
        s("v_lshl_add_u32 v32, v32, 10, v33")
        s(f"s_sub_u32 {sT0}, {sR}, 28")
        s(f"s_lshl_b32 {sT0}, {sT0}, 14")
        s(f"v_add_u32 v32, {sT0}, v32")
        for h in range(h0, 17):
            if h == (h0 if h0 > self.p["wd_nt"] else (h0 + 1) // 2 * 2 + 2 * self.p["sp_first"]):
                s.ext(st)
            self.seen = dict(self.cnt)
            if h < 14:
                pcs = self.take("wd", 4)
                warm = h0 > self.p["wd_nt"]
                if h == (h0 if warm else (h0 + 3) // 2 * 2):
                    s("v_and_b32 v33, 0x180, v32")
                    s(f"v_max_u32 v33, {128 * (4 - self.p['sp_cols'])}, v33")
                    s("v_and_b32 v32, 0xfffffe7f, v32")
                    s("v_or_b32 v32, v32, v33")
                if h % 2 == 0:
                    t = Seq()(f"s_and_b32 {sT1}, {sWS_}, 0xfffffc00")
                    t(f"buffer_load_dword v{34 + h//2}, v32, {SWD}, {sT1} offen")
                    pcs[0] = pcs[0][:-1] + t.l + pcs[0][-1:]
                s.ext(flat(pcs))
            if h - 3 >= h0:
                s.ext(flat(self.take("dr", 8)))
        a, b, c = self.stats_load(False)
        s.ext(a).ext(b).ext(c)
        s("s_waitcnt vmcnt(0) lgkmcnt(0)")
        return s

    def p4(self, regular):
        p = self.p
        A = 128
        s = Seq()
        PF = self.NR - 1
        red = Seq()
        red(f"v_add_u32 v10, {sM0D}, {vL16}")
        for u in (1, 2, 3):
            red(f"v_xor_b32 v{10+u}, {8192*u}, v10")
        red(f"s_add_u32 {sT3}, {sOUTO}, 32768")
        nl = self.na if regular else 0
        epb = groups(self.epB, 1) if regular else []
        if not regular or p["a_chk"] >= 32 + p["x"] + p["xb"]:
            k2 = p["epb_chk"]
            if not regular or p["a_poll"] >= 32 + p["x"] + p["xb"]:
                s.ext(self.poll_issue(22, "v16", sLB, F_A))
            s.ext(flat(epb[:k2]))
            s.ext(self.poll_check(22, "v16", sLB, F_A))
            lds = []
            while nl < p["a_first"]:
                lds.append(self.act_load(nl))
                nl += 1
            vm, ds = self.events(("p4", -1)) if regular else ([], [])
            rest = epb[k2:] + ds
            s.ext(flat(lds[:2] + (merge(rest, lds[2:] + vm) if rest else lds[2:] + vm)))
            epb = []
        if epb and p["epb_n"] == 0:
            lds = []
            while nl < PF:
                lds.append(self.act_load(nl))
                nl += 1
            s.ext(flat(merge(epb, lds)))
        s.ext(self.stamp("p4s") if regular else Seq())

        def send(q, us):
            e = Seq()
            for u in us:
                for hf in range(2):
                    e(f"ds_write_b128 v{10+u}, {vr(A+32*q+8*u+4*hf,4)} offset:{32768*q + 2048*u + 1024*hf}", tok=f"red{q}")
            return e

        def unpack(q, T):
            e = Seq()
            for i in range(8):
                hp = vr(vXR + 4 * q + (i >> 1))
                e(f"v_and_b32 {vr(T+i)}, 0xffff0000, {hp}" if i & 1 else f"v_lshlrev_b32 {vr(T+i)}, 16, {hp}")
            return e

        def recv(q, T, H):
            e = Seq()
            e("s_barrier", need=f"red{q}")
            for hf in range(2):
                for u in (1, 2, 3):
                    e(f"ds_read_b128 {vr(T+8*(u-1)+4*hf,4)}, v10 offset:{32768*q + 2048*u + 1024*hf}")
            d = A + 32 * q
            for hf in range(2):
                r = range(4 * hf, 4 * hf + 4)
                for u in range(3):
                    for i in r:
                        e(f"v_add_f32 {vr(d+i)}, {vr(d+i)}, {vr(T+8*u+i)}")
                for i in r:
                    e(f"v_fma_f32 {vr(d+i)}, {vr(d+i)}, v{14+q}, {vr(H+i)}")
                for i in (2 * hf, 2 * hf + 1):
                    e(f"v_cvt_pk_bf16_f32 {vr(d+i)}, {vr(d+2*i)}, {vr(d+2*i+1)}")
            e(f"buffer_store_dwordx4 {vr(d,4)}, v5, {SOUT}, {sT3 if q else sOUTO} offen {p['st_out']}")
            return e

        extra = {}
        per = -(-len(epb) // max(1, p["epb_n"]))
        for i in range(p["epb_n"]):
            extra[i] = epb[i * per:(i + 1) * per]
        if regular:
            extra.setdefault(p["b_pub"], []).append(self.publish("ast1", sAF, F_A + 256).l)
        extra.setdefault(24, []).extend(groups(red, 1))
        extra.setdefault(25, []).extend(groups(unpack(0, 32), 1))
        extra.setdefault(26, []).extend(groups(unpack(1, 40), 1))
        extra.setdefault(28 + 1, []).append(Seq()("s_barrier").l)
        for i, g in enumerate(groups(send(0, (1, 2, 3)), 1)):
            extra.setdefault(28 + 2 + i, []).append(g)
        for i, g in enumerate(groups(recv(0, 192, 32), 5)):
            extra.setdefault(28 + 9 + i, []).extend(groups(g, 1))
        if regular:
            extra.setdefault(28 + 19, []).append(self.finale().l)
        LA, TL = p["lead_ab"], p["tail"]

        def mm(i, ct):
            q, k = divmod(i, 28)
            return mf32(A + 32 * q + 16 * ct, ar(WD_HOME[k >> 1] + 8 * (k & 1) + 4 * ct, 4), vr(self.ring(64 + i), 4), None if k else "0")
        for i in range(56 - TL):
            q, k = divmod(i, 28)
            assert self.cnt["dr"] >= 4 * (k + 1), k
            m = Seq()(mm(i, 0))(mm(i, 1))
            fill, paced = [], []
            if i == 28 - LA - 1 - p["ab_gap"]:
                paced.append(self.poll_issue(22, "v16", sLB, F_A + 256).l)
            if i == 28 - LA - 1:
                fill.append(self.poll_check(22, "v16", sLB, F_A + 256).l)
            lim = min(56, i + 1 + PF, nl + p["a_rate"])
            if i < 28 - LA:
                lim = min(lim, 28)
            while nl < lim:
                paced.append(self.act_load(nl))
                nl += 1
            if regular:
                vm, ds = self.events(("p4", i))
                paced += vm
                fill += ds
            fill += extra.get(i, [])
            s.ext(weave(m, fill, paced))
            if regular and p["stamps"] is not True:
                s.ext(self.stamp(f"t{i}"))
            if i == 27 and regular:
                s.ext(self.stamp("p4a"))
        assert nl == 56
        m = Seq()
        for i in range(56 - TL, 56):
            m(mm(i, 1))
        s.ext(m)
        m = Seq()
        for i in range(56 - TL, 56):
            m(mm(i, 0))
        if TL >= 6:
            s.ext(weave(m, [], groups(send(1, (2, 3)), 1), start=2))
        else:
            s.ext(m).ext(send(1, (2, 3)))
        if regular:
            s.ext(self.stamp("p4b"))
        s.ext(send(1, (1,)))
        s.ext(recv(1, 192, 40))
        return s

    def finale(self):
        go, done, skip = self.lab("fin"), self.lab("fin"), self.lab("fin")
        s = Seq()
        s(f"s_or_b32 {sT0}, {sR}, {sW}")
        s(f"s_cbranch_scc0 {go}")
        s(f"{done}:")
        t = Seq()
        t(f"{go}:")
        t(f"s_cmp_eq_u32 {sG}, 0")
        t(f"s_cbranch_scc1 {skip}")
        t(f"s_lshl_b32 {sT0}, {sG}, 7")
        t(f"s_add_u32 {sT0}, {sT0}, {EPOCH - 128}")
        t(f"v_mov_b32 v20, {sPTAGlo}")
        t(f"v_mov_b32 v21, {sPTAGhi}")
        t(f"buffer_store_dwordx2 v[20:21], {vZ}, {SWS}, {sT0} offen sc1")
        t(f"{skip}:")
        t(f"s_cmp_lg_u32 {sG}, 7")
        t(f"s_cbranch_scc1 {done}")
        t(f"s_mov_b32 {sT0}, {EPOCH + 7*128}")
        t(f"buffer_store_dwordx2 v[124:125], {vZ}, {SWS}, {sT0} offen sc1")
        t(f"s_branch {done}")
        self.tail.append(t)
        return s

    def dump_stamps(self):
        s = Seq()
        if not self.p["stamps"]:
            return s
        s("s_waitcnt vmcnt(0)")
        s.ext(self.stamp("end"))
        s("s_memrealtime s[94:95]")
        s("s_waitcnt lgkmcnt(0)")
        s("v_writelane_b32 v3, s94, 62")
        s("v_writelane_b32 v3, s98, 63")
        s("v_writelane_b32 v3, s100, 61")
        s(f"s_lshl_b32 {sT0}, s2, 2")
        s(f"s_add_u32 {sT0}, {sT0}, {sW}")
        s(f"s_lshl_b32 {sT0}, {sT0}, 8")
        s(f"s_add_u32 {sT0}, {sT0}, {STAMP}")
        s("v_lshlrev_b32 v20, 2, v0")
        s(f"buffer_store_dword v3, v20, {SWS}, {sT0} offen")
        if self.p.get("enc") is not None:
            skip, loop = self.lab("enc"), self.lab("enc")
            s(f"s_lshl_b32 {sT0}, s2, 2")
            s(f"s_add_u32 {sT0}, {sT0}, {sW}")
            s(f"s_cmp_lg_u32 {sT0}, {self.p.get('encw', 332)}")
            s(f"s_cbranch_scc1 {skip}")
            nm = self.p["enc"]
            s(f"v_readlane_b32 {sT1}, v3, {63 if nm == 'zero' else 30 + self.stamp_names.index(nm)}")
            s(f"{loop}:")
            s("s_memrealtime s[94:95]")
            s("s_waitcnt lgkmcnt(0)")
            s(f"s_sub_u32 {sT2}, s94, {sT1}")
            s(f"s_cmp_lt_u32 {sT2}, 6000")
            s(f"s_cbranch_scc1 {loop}")
            s(f"{skip}:")
        if self.p.get("dbg") is not None:
            skip = self.lab("dbg")
            s(f"s_lshl_b32 {sT0}, s2, 2")
            s(f"s_add_u32 {sT0}, {sT0}, {sW}")
            s(f"s_cmp_lg_u32 {sT0}, {self.p['dbg']}")
            s(f"s_cbranch_scc1 {skip}")
            s("s_load_dwordx2 s[4:5], s[0:1], 64")
            s("s_mov_b32 s6, 64")
            s("s_mov_b32 s7, 0x20000")
            s("v_subrev_u32 v3, s98, v3")
            s(f"v_subrev_u32 v20, {4*(30 + self.p.get('dbg0', 0))}, v20")
            s("s_waitcnt lgkmcnt(0)")
            s("buffer_store_dword v3, v20, s[4:7], 0 offen")
            s(f"{skip}:")
        return s

    def default_bg(self):
        bg = {}

        def put(ph, rng, kind, n=1):
            for k in rng:
                bg.setdefault((ph, k) if k is not None else ph, []).append((kind, n))
        put("u", self.p.get("tw_at", (8, 11, 14)), "tw")
        put("u", range(18, 23), "wo", 2)
        put("u", (23,), "k", 2)
        put("u", (24,), "k", 4)
        put("a", (0, 1), "k")
        put("a", (2, 4, 5, 6), "wo")
        put("a", range(7, 11), "v")
        ts = self.p.get("ts_at", ("a", 11))
        put(ts[0], (ts[1],), "ts")
        put("a", (12, 13), "wo")
        put("a", range(14, 22), "gu")
        put("a", (23, 24, 25, 26), "wd")
        put("a", (33, 34, 35), "od", 2)
        put("wob", (None,), "gu", 4)
        put("wob", (None,), "dr", 8)
        put("p3", range(0, 20), "gu")
        put("p3", range(12, 20), "wd")
        seq = [(19, "dr"), (20, "wd"), (22, "dr"), (23, "wd"), (25, "dr"), (26, "wd"), (28, "dr"), (29, "wd"), (31, "dr")]
        for pos, kind in seq:
            if kind == "dr":
                put("p3", (pos,), "dr", 8)
            else:
                put("p3", (pos, pos + 1), "wd", 2)
        put("p3", range(31, 47), "wd")
        put("p3", range(40, 48), "dr", 2)
        put("p4", range(0, 8), "wd")
        put("p4", range(7, 13), "dr", 4)
        put("p4", range(9, 13), "wd")
        put("p4", range(15, 19), "dr", 4)
        put("p4", range(22, 24), "dr", 4)
        return bg

    def bg_from(self, spec):
        bg = {}
        for ph, rng, kind, n in spec:
            for k in rng:
                bg.setdefault((ph, k) if k is not None else ph, []).append((kind, n))
        return bg

    def build(self):
        p = self.p
        if "spec" in p:
            p["bg"] = self.bg_from(p["spec"])
        for k, v in dict(wd_nt=0, gu_nt=(), fl_full=False, fl_touch=False, a_first=8, a_rate=2, xb=0, hb_gap=2, ab_gap=4, st_pos=(25, 28, 29), gu_landed=3, ob_sync=False, epb_n=7, a_bar=31, h_first=8, h_pub=2, a_chk=99, tail=8).items():
            p.setdefault(k, v)
        p.setdefault("bg", self.default_bg())
        self.wd_slots = list(p.get("wd_slots") or [7, 8, 9, 8, 9, 8, 9, 1, 2, 3, 8, 9, 1, 2])
        self.lds = {a: (None if a in (6, 7) else ("p1", a)) for a in range(10)}
        self.cnt = dict.fromkeys(("wo", "gu", "wd", "dr", "k", "v", "od", "tw", "ts", "dm", "t2"), 0)
        self.wd_hi = 0
        self.cur = {}
        self.w1k = False
        head = Seq()
        if p["stamps"]:
            head("s_memrealtime s[98:99]")
            head("s_memtime s[100:101]")
        head.ext(self.prologue())
        head.ext(self.p1())
        head.ext(self.attention())
        head.ext(self.wo_phase())
        self.wd_max = 14
        head(f"s_cmp_ge_u32 {sR}, 28")
        head("s_cbranch_scc1 L_spare")
        self.saved = (dict(self.cnt), self.wd_hi, dict(self.lds))
        ab = p.get("abh", "")
        st0 = State()
        if ab:
            out = []
            for i in head.l:
                if i.kind == "dma" and "l" in ab and sRS in i.text:
                    i = Ins(i.text.replace(sRS + " offen", "0 offen"), tok=i.tok)
                if i.kind == "dma" and "L" in ab and sRS in i.text:
                    st0.done.add(i.tok)
                    continue
                if "b" in ab and i.kind == "barrier":
                    i = Ins("s_nop 0", need=i.need)
                if "r" in ab and i.kind == "dsr" and i.tok is None:
                    continue
                if "P" in ab:
                    if i.text.startswith("s_cbranch_vccz"):
                        i = Ins(i.text.replace("s_cbranch_vccz", "s_branch"))
                    if i.kind == "vld" and "dwordx2" in i.text:
                        continue
                    if i.text.startswith("s_cmp_lg_u32 " + sLOCAL) or (i.kind == "vst" and i.need):
                        i = Ins(i.text)
                    if i.text.startswith("s_or_b32 " + sLOCAL):
                        i = Ins(f"s_mov_b32 {sLOCAL}, 0")
                if i.kind == "dma" and (("G" in ab and sGS in i.text) or ("O" in ab and sOD in i.text) or ("o" in ab and SWO in i.text)):
                    st0.done.add(i.tok)
                    continue
                if "K" in ab and i.kind == "vld" and "dwordx4 a[" in i.text:
                    continue
                if i.text.startswith("s_cbranch_vccnz L_slow"):
                    continue
                if "w" in ab and i.kind == "dsw":
                    st0.done.add(i.tok)
                    continue
                out.append(i)
            head.l = out
        o1, st = finalize(head.l, st0)
        st_sp = st.copy()
        main = Seq().ext(self.p3())
        main.ext(self.p4(True))
        assert self.cnt["wd"] == 56 and self.cnt["dr"] == 112, self.cnt
        main("L_fin:")
        main.ext(self.dump_stamps())
        main("L_end:")
        main("s_endpgm")
        ab = p.get("abl", "")
        if ab:
            out = []
            for i in main.l:
                if i.kind == "dma" and (("g" in ab and sGS in i.text) or ("w" in ab and sWS_ in i.text)):
                    i = Ins(i.text.replace(sGS + " offen", "0 offen").replace(sWS_ + " offen", "0 offen"), tok=i.tok)
                if i.kind == "dma" and (("G" in ab and sGS in i.text) or ("W" in ab and sWS_ in i.text)):
                    st.done.add(i.tok)
                    continue
                if "b" in ab and i.kind == "barrier":
                    i = Ins("s_nop 0", need=i.need)
                if "H" in ab and i.kind == "vld" and "dwordx4" in i.text:
                    continue
                if "p" in ab and i.text.startswith("s_cbranch_vccz"):
                    i = Ins(i.text.replace("s_cbranch_vccz", "s_branch"))
                if "P" in ab:
                    if i.text.startswith("s_cbranch_vccz"):
                        i = Ins(i.text.replace("s_cbranch_vccz", "s_branch"))
                    if i.kind == "vld" and "dwordx2" in i.text:
                        continue
                    if i.text.startswith("s_cmp_lg_u32 " + sLOCAL):
                        i = Ins(i.text)
                if "S" in ab and i.kind == "vst" and "dwordx4" in i.text and i.tok:
                    st.done.add(i.tok)
                    continue
                if "D" in ab and i.kind == "dsr" and i.tok and i.tok.startswith("wdr"):
                    st.done.add(i.tok)
                    continue
                out.append(i)
            main.l = out
        o2, st2 = finalize(main.l, st)
        self.marks = st2.marks + [("end", st2.clk.t)]
        self.ages, self.vmlog = st2.ages, st2.vmlog
        sp = Seq()("L_spare:")
        sp.ext(self.spare())
        sp.ext(self.p4(False))
        sp("s_branch L_fin")
        o3, _ = finalize(sp.l, st_sp)
        text = render(o1) + render(o2) + render(o3) + "L_hot_end:\n"
        for t in self.tail:
            o, _ = finalize(t.l)
            text += render(o)
        text += "L_abort:\n    s_endpgm\n"
        hdr = open(f"cdna_kernels/{NAME}.s.ref").read().split("; Override launch")[0]
        out = hdr + "; @launch grid=(256,1,1) block=(256,1,1) lds=163840\n"
        out += '.amdgcn_target "amdgcn-amd-amdhsa--gfx950"\n.text\n'
        out += f".globl {NAME}_kernel\n.p2align 8\n.type {NAME}_kernel,@function\n{NAME}_kernel:\n"
        out += text.replace("CODE_BYTES", f"L_hot_end-{NAME}_kernel")
        out += f""".section .rodata,"a"
.p2align 6
.amdhsa_kernel {NAME}_kernel
  .amdhsa_next_free_vgpr 512
  .amdhsa_next_free_sgpr 102
  .amdhsa_accum_offset 256
  .amdhsa_group_segment_fixed_size 0
  .amdhsa_kernarg_size 80
  .amdhsa_user_sgpr_count 2
  .amdhsa_user_sgpr_kernarg_segment_ptr 1
  .amdhsa_system_sgpr_workgroup_id_x 1
.end_amdhsa_kernel
"""
        return out


def generate(outp, ages=0, **kw):
    g = Gen(**kw)
    txt = g.build()
    if g.p["stamps"]:
        txt = txt.replace("; @launch", "; stamps: " + ",".join(g.stamp_names) + "\n; model: " + ",".join(f"{n}={t}" for n, t in g.marks) + "\n; @launch", 1)
    open(outp, "w").write(txt)
    prev, est = 0, []
    for n, t in g.marks:
        if re.match(r"[stua]\d+$", n):
            continue
        est.append(f"{n}:{t-prev}")
        prev = t
    if ages:
        print("  short waits (after mark, age, younger ops, what):", "; ".join(f"{a[0]} {a[1]} {a[2]} {a[3]}" for a in g.ages if a[1] < ages))
    print("wrote", outp, len(txt), "bytes; issue-model cycles", " ".join(est), "total", prev)


if __name__ == "__main__":
    import ast
    kw = {}
    outp = f"cdna_kernels/{NAME}.s"
    for a in sys.argv[1:]:
        k, v = a.split("=", 1)
        if k == "out":
            outp = v
            continue
        try:
            kw[k] = ast.literal_eval(v)
        except Exception:
            kw[k] = v
    generate(outp, **kw)
```

```python
from gen import *
R = range
N = (None,)
GP = [0, 1, 2, 4, 5, 6, 8, 9, 10, 12, 13, 14] + list(R(16, 24))
BASE = dict(x=16, epa_steps=4, pre1=260, sp_first=1, sp_cols=1, fl_full=True,
            u_flk=15, u_pk=19, u_ck=22, u_flv=22, a_pv=0, a_cv=6, lag=4, a_bar=8,
            w_pub=8, w_poll=2, w_chk=16, h_pub=4, lead_hb=4, hb_gap=4, st_pos=(24, 27, 28),
            a_flag=42, a_poll=46, a_chk=99, epb_chk=99, epb_n=0, a_first=11, a_rate=2, b_pub=0, lead_ab=8, ab_gap=10)
FRONT = [("u", (1,), "ts", 1), ("u", (8, 10, 11, 13, 14, 15, 16, 16), "wo", 1), ("u", R(18, 22), "wo", 2),
         ("u", (23,), "k", 3), ("u", (24,), "k", 5), ("a", (6, 7), "v", 2), ("a", (33, 34, 35), "od", 2)]
G1 = [("a", (8, 8, 9, 9), "gu", 1), ("a", (24, 25, 26, 28), "gu", 1), ("woa", N, "gu", 4)]
def late(n0):
    if n0 == 0:
        return ([("p3", R(20, 24), "wd", 1), ("p3", (24, 25), "wd", 2), ("p3", (27,), "dr", 8), ("p3", (28, 29, 30, 31), "wd", 2),
                 ("p3", (30,), "dr", 8), ("p3", R(32, 48), "wd", 2), ("p3", R(36, 46), "dr", 4),
                 ("p4", (-1,), "dr", 24), ("p4", R(0, 16, 2), "wd", 1), ("p4", R(2, 6), "dr", 4), ("p4", (19, 20), "dr", 4), ("p4", (24, 25), "dr", 4)],
                [8, 9, 5, 8, 9, 6, 7, 5, 8, 9, 6, 7, 5, 8])
    if n0 == 2:
        return ([("p3", R(20, 24), "wd", 1), ("p3", (24, 25), "wd", 2), ("p3", (27,), "dr", 8), ("p3", (28, 29, 30, 31), "wd", 2),
                 ("p3", (30,), "dr", 8), ("p3", R(32, 48), "wd", 2), ("p3", R(36, 46), "dr", 4),
                 ("p4", (-1,), "dr", 24), ("p4", R(2, 6), "dr", 4)], [8, 9, 5, 8, 9, 6, 7, 5, 8, 9, 6, 7])
    if n0 == 3:
        return ([("p3", R(20, 28), "wd", 1), ("p3", (27,), "dr", 8), ("p3", (28, 29, 30, 31), "wd", 2), ("p3", (31,), "dr", 8),
                 ("p3", R(32, 46), "wd", 2), ("p3", R(36, 44), "dr", 4),
                 ("p4", (-1,), "dr", 24), ("p4", R(2, 6), "dr", 4)], [8, 9, 5, 8, 9, 6, 7, 5, 8, 9, 6])
    if n0 == 4:
        return ([("p3", R(20, 32), "wd", 1), ("p3", (28,), "dr", 8), ("p3", (31,), "dr", 8),
                 ("p3", R(32, 46), "wd", 2), ("p3", R(38, 44), "dr", 4),
                 ("p4", (-1,), "dr", 24), ("p4", R(2, 6), "dr", 4)], [8, 9, 5, 8, 9, 6, 7, 5, 8, 9])
def mk(front=FRONT, gu=G1, early=(), slots=(), gp=GP, **kw):
    n = sum(len(r) * k for _, r, _, k in gu)
    sp, sl = late(len(slots))
    d = dict(BASE)
    d.update(spec=list(front) + list(gu) + list(early) + [("p3", gp[:32 - n], "gu", 1)] + sp, wd_slots=list(slots) + sl)
    d.update(kw)
    return d
if __name__ == "__main__":
    L2 = ("vpass", "exch", "attA", "attB", "p3s", "p3c", "end")
    OLDF = [("u", (1,), "ts", 1), ("u", R(18, 23), "wo", 2), ("u", (23,), "k", 3), ("u", (24,), "k", 5), ("a", R(0, 6), "wo", 1),
            ("a", (6, 7), "v", 2), ("a", (33, 34, 35), "od", 2)]
    V = {"a": mk(),
         "b": mk(early=[("a", R(10, 18), "wd", 1), ("a", (31, 32), "dr", 8)], slots=(8, 9), wd_nt=2),
         "c": mk(early=[("a", (9, 9, 10, 10, 11, 11, 12, 12), "wd", 1), ("a", (31, 32), "dr", 8)], slots=(8, 9), wd_nt=2,
                 gu=[("a", (13, 13, 14, 14), "gu", 1)] + G1[1:]),
         "d": mk(gu_nt=(0,)),
         "e": mk(gu_nt=(0, 1, 2)),
         "f": mk(front=OLDF, a_bar=31),
         "g": mk(early=[("wob", N, "wd", 8), ("p3", (1, 2, 3, 4), "dr", 4)], slots=(4, 5), wd_nt=2),
         }
    for n, d in V.items():
        generate(f"k_{n}.s", stamps=L2, **d)
```

```python
from sched import *
best = mk()
if __name__ == "__main__":
    generate(f"cdna_kernels/{NAME}.s", **best)
    generate("k_h1.s", **mk(st_out="nt"))
    generate("k_h2.s", **mk(st_out="sc1"))
    generate("k_safe.s", force_safe=True, force_slow=True, **best)
```
